```python
import torch

def _softmax(x, axis=-1):
    return torch.softmax(x, dim=axis)
def _gelu(x):
    return torch.nn.functional.gelu(x, approximate="tanh")
def _silu(x):
    return torch.nn.functional.silu(x)
def _sigmoid(x):
    return torch.sigmoid(x)
def _layernorm(x, axis=-1, eps=1e-5):
    m = x.mean(dim=axis, keepdim=True)
    v = x.var(dim=axis, keepdim=True, unbiased=False)
    return (x - m) / torch.sqrt(v + eps)
def _scatter_add(tgt, idx, src, axis=0):
    return tgt.clone().index_add_(axis, idx, src)
def _segment_sum(src, seg, n):
    out = torch.zeros((n,) + src.shape[1:], dtype=src.dtype)
    return out.index_add_(0, seg, src)
def _pad(x, pw):
    flat = tuple(v for pair in reversed(pw) for v in pair)
    return torch.nn.functional.pad(x, flat)

kernel_name = 'standalone__edge_featured_mpnn_gatedgcn__graph'

def setup_inputs():

    _w = (lambda a: (lambda t: t.to(torch.bfloat16) if t.is_floating_point() else t)(torch.as_tensor(a)))
    N, deg, D, De = 25000, 16, 128, max(4, 1)
    E = N * deg
    return {
        "x": _w((lambda *s: torch.randn(*s, dtype=torch.bfloat16) * 0.4)(N, D)),
        "e_attr": _w((lambda *s: torch.randn(*s, dtype=torch.bfloat16) * 0.8)(E, De)),
        "src": _w((lambda lo, hi, *s: torch.randint(lo, hi, s))(0, N, E).to(torch.int64)),
        "dst": _w((lambda lo, hi, *s: torch.randint(lo, hi, s))(0, N, E).to(torch.int64)),
        "w_a": _w((lambda *s: torch.randn(*s, dtype=torch.bfloat16) * 0.4)(D, D)),
        "w_b": _w((lambda *s: torch.randn(*s, dtype=torch.bfloat16) * 0.4)(D, D)),
        "w_c": _w((lambda *s: torch.randn(*s, dtype=torch.bfloat16) * 0.8)(De, D)),
        "w_u": _w((lambda *s: torch.randn(*s, dtype=torch.bfloat16) * 0.05)(D, D)),
        "w_v": _w((lambda *s: torch.randn(*s, dtype=torch.bfloat16) * 0.05)(D, D)),
    }

def reference(x, e_attr, src, dst, w_a, w_b, w_c, w_u, w_v):
    N, D = x.shape
    hv = x @ w_v
    g = x[dst] @ w_a + x[src] @ w_b + e_attr @ w_c
    eta = _sigmoid(g)
    denom = _segment_sum(eta, dst, N) + 1e-6
    eta_n = eta / denom[dst]
    agg = _segment_sum(eta_n * hv[src], dst, N)
    z = x @ w_u + agg
    relu_z = torch.where(z > 0, z, 0 * z)
    return x + relu_z
```

```python
import re

TRANS = ('v_exp_f32', 'v_rcp_f32', 'v_log_f32', 'v_rsq_f32', 'v_sqrt_f32', 'v_sin_f32', 'v_cos_f32', 'v_rcp_iflag_f32')
DPP_KEYS = ('row_shr', 'row_shl', 'row_bcast', 'quad_perm', 'row_ror', 'wave_shr', 'row_mirror', 'row_half_mirror', 'row_newbcast')


def regs_of(tok):
    tok = tok.strip()
    tok = tok.lstrip('-').strip('|')
    m = re.fullmatch(r'([vsa])(\d+)', tok)
    if m:
        return {(m.group(1), int(m.group(2)))}
    m = re.fullmatch(r'([vsa])\[(\d+):(\d+)\]', tok)
    if m:
        return {(m.group(1), i) for i in range(int(m.group(2)), int(m.group(3)) + 1)}
    if tok == 'vcc':
        return {('s', 106), ('s', 107)}
    if tok == 'vcc_lo':
        return {('s', 106)}
    if tok == 'vcc_hi':
        return {('s', 107)}
    if tok == 'exec':
        return {('s', 126), ('s', 127)}
    if tok == 'm0':
        return {('s', 124)}
    return set()


class Ins:
    def __init__(self, text):
        self.text = text
        body = text.split(';')[0].strip()
        parts = body.split(None, 1)
        self.op = parts[0]
        rest = parts[1] if len(parts) > 1 else ''
        ops, cur, depth = [], '', 0
        for ch in rest:
            if ch == '[':
                depth += 1
            if ch == ']':
                depth -= 1
            if ch == ',' and depth == 0:
                ops.append(cur.strip())
                cur = ''
            else:
                cur += ch
        if cur.strip():
            ops.append(cur.strip())
        self.mods = ''
        if ops:
            last = ops[-1].split(None, 1)
            ops[-1] = last[0]
            self.mods = last[1] if len(last) > 1 else ''
        self.ops = ops
        op = self.op
        self.mfma = op.startswith('v_mfma')
        self.valu = op.startswith('v_') and not self.mfma
        self.trans = any(op.startswith(t) for t in TRANS)
        self.salu = op.startswith('s_')
        self.vmem = op.startswith('buffer_') or op.startswith('global_')
        self.ds = op.startswith('ds_')
        self.dpp = any(k in self.mods for k in DPP_KEYS)
        self.lds_dma = self.vmem and re.search(r'\blds\b', self.mods) is not None
        self.opsel = self.valu and ('sdwa' in op or 'dst_sel' in self.mods)
        R = [regs_of(o) for o in ops]
        self.dst, self.src = set(), set()
        self.srcC = set()
        self.srcAB = set()
        self.lanesel = set()
        self.store_wide = set()
        if self.mfma:
            self.dst = R[0]
            self.srcAB = R[1] | R[2]
            self.srcC = R[3]
            self.src = self.srcAB | self.srcC
        elif self.valu:
            nd = 1
            if op.startswith(('v_add_co', 'v_sub_co', 'v_subrev_co', 'v_addc_co', 'v_subb_co', 'v_div_scale', 'v_mad_u64_u32')):
                nd = 2
            for r in R[:nd]:
                self.dst |= r
            for r in R[nd:]:
                self.src |= r
            if op.startswith('v_cmpx'):
                self.dst |= regs_of('exec')
            if op.startswith(('v_fmac', 'v_mac', 'v_writelane', 'v_pk_fmac')) or self.dpp or op.startswith('v_permlane'):
                self.src |= R[0]
            if op.startswith('v_permlane'):
                self.dst |= R[1]
            if op.startswith('v_cndmask') and len(ops) == 3:
                self.src |= regs_of('vcc')
            if op.startswith(('v_readlane', 'v_writelane')):
                self.lanesel = R[2]
        elif self.vmem:
            if 'store' in op or ('atomic' in op):
                for r in R:
                    self.src |= r
                if op.endswith('x3') or op.endswith('x4'):
                    self.store_wide = R[0] if op.startswith('buffer_') else R[1]
            elif self.lds_dma:
                for r in R:
                    self.src |= r
                self.src |= regs_of('m0')
            else:
                self.dst = R[0]
                for r in R[1:]:
                    self.src |= r
        elif self.ds:
            if op.startswith(('ds_read', 'ds_bpermute', 'ds_permute', 'ds_swizzle')) or '_rtn' in op:
                self.dst = R[0]
                for r in R[1:]:
                    self.src |= r
            else:
                for r in R:
                    self.src |= r
        elif self.salu:
            if op.startswith(('s_cmp', 's_cbranch', 's_branch', 's_waitcnt', 's_barrier', 's_nop', 's_endpgm', 's_setpc', 's_bitcmp', 's_setprio', 's_sleep')):
                for r in R:
                    self.src |= r
            else:
                if R:
                    self.dst = set(R[0])
                for r in R[1:]:
                    self.src |= r
                if 'saveexec' in op:
                    self.dst |= regs_of('exec')
        self.states = 1
        if op == 's_nop':
            self.states = int(ops[0], 0) + 1


def vonly(s):
    return {r for r in s if r[0] in 'va'}


def sonly(s):
    return {r for r in s if r[0] == 's'}


def need(prev, cur):
    n = 0
    if prev.valu:
        vd, sd = vonly(prev.dst), sonly(prev.dst)
        if cur.valu and cur.dpp and vd & cur.src:
            n = max(n, 2)
        if cur.valu and cur.op.startswith('v_permlane') and vd & cur.src:
            n = max(n, 2)
        if cur.valu and sd & cur.src:
            n = max(n, 2)
        if cur.vmem and sd & cur.src:
            n = max(n, 5)
        if cur.valu and sd & cur.lanesel:
            n = max(n, 4)
        if cur.op.startswith(('v_readlane', 'v_readfirstlane')) and vd & cur.src:
            n = max(n, 1)
        if prev.trans and cur.valu and not cur.trans and vd & cur.src:
            n = max(n, 1)
        if prev.opsel and cur.valu and vd & (cur.src | cur.dst):
            n = max(n, 1)
        if cur.mfma and vd & cur.src:
            n = max(n, 2)
        if sd & regs_of('exec'):
            if cur.mfma or cur.op.startswith(('v_readlane', 'v_readfirstlane', 'v_writelane', 'v_permlane')):
                n = max(n, 4)
            if cur.valu and cur.dpp:
                n = max(n, 5)
    if prev.mfma:
        D = prev.dst
        if cur.mfma:
            if D & cur.srcAB:
                n = max(n, 8)
            if D & cur.srcC and D != cur.srcC:
                n = max(n, 6)
            if D & cur.dst and D != cur.srcC:
                n = max(n, 0)
        elif cur.valu or cur.vmem or cur.ds:
            if D & (cur.src | cur.dst):
                n = max(n, 8)
        if cur.valu and prev.srcC & cur.dst:
            n = max(n, 3)
    if prev.store_wide:
        if cur.valu and prev.store_wide & cur.dst:
            n = max(n, 2)
        elif prev.store_wide & cur.dst:
            n = max(n, 1)
    if prev.salu and ('s', 124) in prev.dst and cur.lds_dma:
        n = max(n, 1)
    return n


class Asm:
    def __init__(self):
        self.lines = []
        self.hist = []
        self.nops = 0

    def raw(self, s):
        self.lines.append(s)

    def label(self, name):
        self.lines.append(name + ':')

    def c(self, s):
        self.lines.append('    ; ' + s)

    def reset(self):
        self.hist = []

    def __call__(self, text):
        for t in text.strip().split('\n'):
            t = t.strip()
            if not t or t.startswith(';'):
                continue
            if t.endswith(':'):
                self.label(t[:-1])
                continue
            ins = Ins(t)
            dist = 0
            pad = 0
            for p in reversed(self.hist):
                if dist >= 12:
                    break
                n = need(p, ins)
                if n > dist:
                    pad = max(pad, n - dist)
                dist += p.states
            if pad:
                nop = Ins('s_nop %d' % (pad - 1))
                self.hist.append(nop)
                self.lines.append('    s_nop %d' % (pad - 1))
                self.nops += 1
            self.hist.append(ins)
            self.lines.append('    ' + t)

    def text(self):
        return '\n'.join(self.lines) + '\n'


def vr(a, n=1):
    return 'v%d' % a if n == 1 else 'v[%d:%d]' % (a, a + n - 1)


def sr(a, n=1):
    return 's%d' % a if n == 1 else 's[%d:%d]' % (a, a + n - 1)
```

```python
import sys, struct, os
sys.path.insert(0, os.path.dirname(os.path.abspath(__file__)))
from asmlib import Asm, vr, sr

NAME = 'standalone__edge_featured_mpnn_gatedgcn__graph'
N, E = 25000, 400000
NB, BN = 64, 392
ROWS = 25096
SL = ROWS * 128
DUMMY = 25088
CH = 1564
NCH = 256
CHB = 18816
REC = 4 * SL
OFF = REC + NCH * CHB
TF = OFF + NB * 1024
WS_USED = TF + 1024
NZ = 17
NLOG2E = struct.unpack('<I', struct.pack('<f', -1.4426950408889634))[0]
EPS = struct.unpack('<I', struct.pack('<f', 1e-6))[0]
R = 7

L_CNT, L_DH, L_BL, L_FLAG, L_NID, HIST = 0, 1600, 1856, 2112, 2176, 3840
L_S, L_E = 4096, 36864
L_W, L_STG = L_E, L_E + 32768
L_U = 104448
LDS = L_U + 416 * 128
CAP = 1024
L_ACC = 4096
SPIN = 0x8000

opts = dict(U=8, force_slow=0, stamps=0, prio=1, x=0, gsc1=1, line=0, sleep=2, xdelay=0, barlate=1, xw=4, xrel=2, tsc=1, xnt=0, wsoff=0, ent=0)
for a_ in sys.argv[2:]:
    k, v = a_.split('=')
    opts[k] = int(v)
U = opts['U']
GAP = U
GS = ' sc1' if opts['gsc1'] else ''


def srd(a, r, lo, hi, nbytes):
    a(f's_mov_b32 s{r}, s{lo}')
    a(f's_and_b32 s{r+1}, s{hi}, 0xffff')
    a(f's_mov_b32 s{r+2}, {nbytes}')
    a(f's_mov_b32 s{r+3}, 0x00020000')


def srd_ws(a, r, off, nbytes, stride=0):
    a(f's_add_u32 s{r}, s26, {off}')
    a(f's_addc_u32 s{r+1}, s27, 0')
    a(f's_and_b32 s{r+1}, s{r+1}, 0xffff')
    if stride:
        a(f's_or_b32 s{r+1}, s{r+1}, {stride << 16}')
    a(f's_mov_b32 s{r+2}, {nbytes}')
    a(f's_mov_b32 s{r+3}, 0x00020000')


def wsoff(a):
    if opts['wsoff']:
        a(f's_add_u32 s26, s26, {opts["wsoff"] << 20}')
        a('s_addc_u32 s27, s27, 0')


def scan_incl(a, v):
    for sh in (1, 2, 4, 8):
        a(f'v_add_u32_dpp v{v}, v{v}, v{v} row_shr:{sh} row_mask:0xf bank_mask:0xf bound_ctrl:1')
    a(f'v_add_u32_dpp v{v}, v{v}, v{v} row_bcast:15 row_mask:0xa bank_mask:0xf')
    a(f'v_add_u32_dpp v{v}, v{v}, v{v} row_bcast:31 row_mask:0xc bank_mask:0xf')


def stamp(a, idx, vt=126, grp=1):
    if not opts['stamps']:
        return
    if opts['stamps'] != grp and 7 <= idx <= 14:
        return
    a(f'''
    s_memrealtime s[96:97]
    s_mov_b64 s[100:101], exec
    s_mov_b64 exec, 1
    v_mov_b32 v{vt+1}, s98
    s_waitcnt lgkmcnt(0)
    v_mov_b32 v{vt}, s96
    ds_write_b32 v{vt+1}, v{vt} offset:{idx*4}
    s_mov_b64 exec, s[100:101]
    ''')


def stamp_init(a):
    if not opts['stamps']:
        return
    a(f'''
    s_lshl_b32 s98, s3, 6
    s_add_u32 s98, s98, {LDS}
    v_lshl_add_u32 v30, v1, 2, s98
    v_mov_b32 v31, -1
    s_mov_b64 exec, 0xffff
    ds_write_b32 v30, v31
    s_mov_b64 exec, -1
    ''')


def stamp_dump(a):
    if not opts['stamps']:
        return
    a(f'''
    s_waitcnt vmcnt(0)
    s_mov_b64 exec, 0xffff
    v_lshl_add_u32 v30, v1, 2, s98
    ds_read_b32 v31, v30
    s_lshl_b32 s96, s99, 4
    s_or_b32 s96, s96, s3
    s_lshl_b32 s96, s96, 6
    s_add_u32 s96, s96, {64 << 20}
    v_lshl_add_u32 v30, v1, 2, s96
    s_waitcnt lgkmcnt(0)
    global_store_dword v30, v31, s[26:27]
    ''')


def poll(a, name, v, load, cmp):
    a(f'''
    s_mov_b32 s80, {SPIN}
    {name}:
    {cmp}
    s_cmp_eq_u64 vcc, -1
    s_cbranch_scc1 {name}_ok
    s_sub_u32 s80, s80, 1
    s_cbranch_scc1 {name}_ok
    s_sleep {opts['sleep']}
    {load}
    s_waitcnt vmcnt(0)
    s_branch {name}
    {name}_ok:
    ''')


ZLOAD = 'buffer_load_dword v15, v14, s[72:75], 0 offen sc1'


def zcheck(a, name):
    poll(a, name, 15, ZLOAD, 'v_cmp_ne_u32 vcc, 0, v15')


def gen(a):
    a.raw('.globl kf_kernel\n.p2align 8\n.type kf_kernel,@function')
    a.label('kf_kernel')
    a(f'''
    s_load_dwordx16 s[4:19], s[0:1], 0
    s_load_dwordx8 s[20:27], s[0:1], 64
    s_cmp_ge_u32 s2, 256
    s_cbranch_scc1 kf_exit
    v_lshrrev_b32 v1, 6, v0
    v_readfirstlane_b32 s3, v1
    v_and_b32 v1, 63, v0
    s_mov_b32 s99, s2
    s_and_b32 s28, s2, 3
    s_bfe_u32 s29, s2, 0x10002
    s_lshl_b32 s29, s29, 5
    s_lshr_b32 s30, s2, 3
    s_add_u32 s29, s29, s30
    s_mul_i32 s30, s28, {SL}
    s_lshl_b32 s94, s28, 6
    v_lshlrev_b32 v4, 3, v0
    v_lshlrev_b32 v5, 4, v0
    v_and_b32 v2, 15, v1
    v_lshrrev_b32 v3, 4, v1
    v_min_u32 v14, {NZ-1}, v1
    v_lshlrev_b32 v14, 2, v14
    v_lshlrev_b32 v7, 2, v1
    v_mov_b32 v11, 0
    v_lshlrev_b32 v25, 2, v0
    ds_write_b32 v25, v11
    ''')
    stamp_init(a)
    a('''
    s_cmp_gt_u32 s3, 12
    s_cbranch_scc1 kf_aux
    ''')
    X = 32

    def lds_init():
        a(f'''
        v_mov_b32 v24, {DUMMY}
        v_mov_b32 v25, {DUMMY}
        v_mov_b32 v26, {DUMMY}
        v_mov_b32 v27, {DUMMY}
        ''')
        for i in range(2):
            a(f'ds_write_b128 v5, v[24:27] offset:{L_S + i*16384}')

    def spin(name, vaddr, vt, off, n, sleep=0):
        a(f'''
        {name}:
        ds_read_b32 v{vt}, v{vaddr} offset:{off}
        s_waitcnt lgkmcnt(0)
        v_readfirstlane_b32 s53, v{vt}
        s_cmp_ge_u32 s53, {n}
        s_cbranch_scc1 {name}_ok
        ''')
        if sleep:
            a(f's_sleep {sleep}')
        a(f'''
        s_branch {name}
        {name}_ok:
        ''')

    a(f'''
    v_lshrrev_b32 v22, 2, v1
    v_lshrrev_b32 v9, 4, v1
    v_and_b32 v9, 2, v9
    v_and_b32 v10, 3, v1
    v_xor_b32 v9, v9, v10
    v_lshlrev_b32 v9, 4, v9
    v_lshl_add_u32 v22, v22, 8, v9
    v_mov_b32 v16, 0
    v_mov_b32 v17, 0
    v_mov_b32 v18, 0
    v_mov_b32 v19, 0
    v_lshlrev_b32 v20, 4, v1
    v_mov_b32 v21, 1
    s_lshl_b32 s52, s2, 12
    s_add_u32 s52, s52, {OFF}
    s_and_b32 s64, s3, 7
    s_lshl_b32 s65, s64, 12
    s_add_u32 s65, s65, s94
    s_lshl_b32 s64, s64, 10
    s_add_u32 s64, s64, {L_W}
    s_waitcnt lgkmcnt(0)
    ''')
    wsoff(a)
    srd(a, 32, 26, 27, WS_USED)
    srd(a, 72, 24, 25, 256)
    a(f'''
    s_cmp_lt_u32 s3, 8
    s_cbranch_scc1 kf_gw
    s_cmp_lg_u32 s3, 12
    s_cbranch_scc1 kf_g0
    s_cmp_ge_u32 s2, {NZ}
    s_cbranch_scc1 kf_g0
    s_setprio 3
    ''')
    for i in range(4):
        a(f'buffer_store_dwordx4 v[16:19], v20, s[32:35], s52 offen offset:{i*1024} sc1')
    a(f'''
    s_barrier
    s_lshl_b32 s52, s2, 2
    s_mov_b64 exec, 1
    s_waitcnt vmcnt(0)
    buffer_store_dword v21, off, s[72:75], s52 sc1
    s_mov_b64 exec, -1
    s_setprio 0
    s_branch kf_g2
    kf_gw:
    ''')
    for m, p in enumerate((14, 20, 12, 18)):
        srd(a, 60, p, p + 1, 32768)
        a(f's_add_u32 m0, s64, {m*8192}')
        a(f'buffer_load_dwordx4 v22, s[60:63], s65 offen lds')
    a(f'''
    kf_g0:
    s_barrier
    kf_g2:
    ''')
    stamp(a, 15, 30)
    lds_init()
    a(f'''
    v_and_b32 v6, 7, v2
    v_lshlrev_b32 v6, 8, v6
    v_lshl_add_u32 v6, v3, 4, v6
    v_lshrrev_b32 v12, 3, v2
    v_lshl_add_u32 v6, v12, 6, v6
    s_mul_i32 s62, s29, {BN*256}
    s_add_u32 s58, s62, {BN*256}
    s_min_u32 s58, s58, {N*256}
    s_lshl_b32 s63, s3, 13
    s_add_u32 s62, s62, s63
    s_add_u32 s63, s62, 0x1000
    s_mov_b32 s56, s4
    s_and_b32 s57, s5, 0xffff
    s_mov_b32 s59, 0x00020000
    v_lshrrev_b32 v12, 2, v2
    v_lshl_add_u32 v12, v3, 3, v12
    v_lshlrev_b32 v12, 6, v12
    v_and_b32 v13, 3, v2
    v_lshl_add_u32 v12, v13, 3, v12
    v_and_b32 v13, 1, v3
    v_lshl_add_u32 v12, v13, 5, v12
    v_add_u32 v12, {L_W}, v12
    v_xor_b32 v13, 32, v12
    v_lshlrev_b32 v8, 7, v2
    v_lshl_add_u32 v8, v3, 4, v8
    ''')
    if opts['line']:
        a(f'''
        v_and_b32 v9, 7, v2
        v_lshlrev_b32 v8, 7, v9
        v_lshl_add_u32 v8, v3, 4, v8
        v_lshrrev_b32 v9, 3, v2
        v_lshl_add_u32 v8, v9, 6, v8
        v_xor_b32 v15, {1024 + 64}, v8
        ''')
    a(f'''
    v_and_b32 v9, 7, v2
    v_xor_b32 v9, v9, v3
    v_lshlrev_b32 v9, 4, v9
    v_lshl_add_u32 v9, v2, 7, v9
    s_lshl_b32 s60, s3, 12
    s_add_u32 s31, s60, {L_U}
    v_add_u32 v9, s31, v9
    v_xor_b32 v10, 64, v9
    s_mov_b32 s54, {NLOG2E:#x}
    s_mov_b32 s55, {NLOG2E:#x}
    ''')
    srd(a, 40, 4, 5, N * 256)
    a(f's_mul_i32 s31, s29, {BN*128}')
    a(f's_add_u32 s31, s31, s30')
    srd_ws(a, 44, 's31', BN * 128)
    a(f'''
    s_cmp_ge_u32 s3, 8
    s_cbranch_scc1 kf_g3
    s_mov_b64 exec, 1
    s_waitcnt vmcnt(0)
    ds_add_u32 v11, v21 offset:{L_FLAG+16}
    s_mov_b64 exec, -1
    kf_g3:
    s_add_u32 s61, s3, 5
    s_sub_u32 s31, s3, 8
    s_cmp_ge_u32 s3, 8
    s_cselect_b32 s61, s31, s61
    s_sub_u32 s61, s61, {opts['xw'] - 1}
    s_cmp_lt_i32 s61, 1
    s_cbranch_scc1 kf_sx_ok
    ''')
    spin('kf_sx', 11, 16, L_FLAG + 20, 's61', 1)
    if opts['xdelay']:
        a(f's_sleep {opts["xdelay"]}')
    XS = ('', ' nt', ' sc1')[opts['xnt']]
    for tt in range(2):
        for hb in range(2):
            for hf in range(2):
                a(f'buffer_load_dwordx4 {vr(X + 16*tt + 4*(2*hf+hb), 4)}, v6, s[56:59], s{62+tt} offen offset:{hb*2048 + hf*128}{XS}')
    stamp(a, 0, 4)
    a(f'''
    s_mov_b64 exec, 1
    s_waitcnt vmcnt({opts['xrel']})
    ds_add_u32 v11, v21 offset:{L_FLAG+20}
    s_mov_b64 exec, -1
    ''')
    stamp(a, 1, 4)
    spin('kf_sw', 11, 16, L_FLAG + 16, 8, 1)
    stamp(a, 2, 4)
    WR = 16
    seq = [(p, ct, m, s) for p in range(2) for ct in range(2) for m in range(2) for s in range(4)]
    ldsq = []

    def acc(p, ct, m, tt):
        return 64 + p*32 + ct*16 + m*8 + tt*4

    def wread(i):
        p, ct, m, s = seq[i]
        for h in range(2):
            a(f'ds_read_b64_tr_b16 {vr(WR + 4*(i & 3) + 2*h, 2)}, v{12+ct} offset:{(2*p+m)*8192 + s*2048 + h*256}')
            ldsq.append(i)

    TS = ('', ' sc1', ' nt', ' sc0 sc1')[opts['tsc']]

    def pack(p, ct):
        ops = []
        for tt in range(2):
            lo, hi = acc(p, ct, 0, tt), acc(p, ct, 1, tt)
            for h in range(2):
                ops.append(f'v_pk_mul_f32 {vr(lo+2*h,2)}, {vr(lo+2*h,2)}, s[54:55]')
            if p == 0 and opts['line']:
                if ct == 0:
                    for r in range(4):
                        ops.append(f'v_cvt_pk_bf16_f32 v{lo+r}, v{lo+r}, v{hi+r}')
                        ops.append(f'v_mov_b32 v{hi+r}, v{lo+r}')
                else:
                    l0, h0 = acc(p, 0, 0, tt), acc(p, 0, 1, tt)
                    for r in range(4):
                        ops.append(f'v_cvt_pk_bf16_f32 v{lo+r}, v{lo+r}, v{hi+r}')
                    for r in range(4):
                        ops.append(f'v_mov_b32_dpp v{l0+r}, v{lo+r} row_ror:8 row_mask:0xf bank_mask:0xc')
                    for r in range(4):
                        ops.append(f'v_mov_b32_dpp v{h0+r}, v{lo+r} row_ror:8 row_mask:0xf bank_mask:0x3')
                    if not opts['x'] & 1:
                        ops.append(f'buffer_store_dwordx4 {vr(l0,4)}, v8, s[44:47], s60 offen offset:{tt*2048}{TS}')
                        ops.append(f'buffer_store_dwordx4 {vr(h0,4)}, v15, s[44:47], s60 offen offset:{tt*2048}{TS}')
                continue
            for r in range(4):
                ops.append(f'v_cvt_pk_bf16_f32 v{lo+r}, v{lo+r}, v{hi+r}')
            if p == 0:
                if not opts['x'] & 1:
                    ops.append(f'buffer_store_dwordx4 {vr(lo,4)}, v8, s[44:47], s60 offen offset:{tt*2048 + ct*64}{TS}')
            else:
                ops.append(f'ds_write_b128 v{9+ct}, {vr(lo,4)} offset:{tt*2048}')
        return ops
    for i in range(3):
        wread(i)
    for tt in range(2):
        a(f's_waitcnt vmcnt({4 - 4*tt})')
        for hf in range(2):
            A_, B_ = X + 16*tt + 8*hf, X + 16*tt + 8*hf + 4
            for r in range(4):
                a(f'v_mov_b32 v{124+r}, v{A_+r}')
            for r in range(4):
                a(f'v_mov_b32_dpp v{A_+r}, v{B_+r} row_ror:8 row_mask:0xf bank_mask:0xc')
            for r in range(4):
                a(f'v_mov_b32_dpp v{B_+r}, v{124+r} row_ror:8 row_mask:0xf bank_mask:0x3')
    pend = []
    for i, (p, ct, m, s) in enumerate(seq):
        if i + 3 < len(seq):
            wread(i + 3)
        last = max(j for j, t in enumerate(ldsq) if t == i)
        w = f'lgkmcnt({min(15, len(ldsq) - 1 - last)})'
        a(f's_waitcnt {w}')
        for tt in range(2):
            c = '0' if s == 0 else vr(acc(p, ct, m, tt), 4)
            a(f'v_mfma_f32_16x16x32_bf16 {vr(acc(p,ct,m,tt),4)}, {vr(WR + 4*(i & 3), 4)}, {vr(X + 16*tt + 4*s, 4)}, {c}')
            if i % 8 >= 1:
                for _ in range(3):
                    if pend:
                        o = pend.pop(0)
                        a(o)
                        if o.startswith('ds_'):
                            ldsq.append(-1)
        if i == 3:
            stamp(a, 3, 4)
        if i in (7, 15, 23):
            stamp(a, 7 + i // 8, 4, 2)
        if i % 8 == 7:
            assert not pend
            pend = pack(p, ct)
    for o in pend:
        a(o)
    a(f'''
    s_cmp_lg_u32 s29, {NB-1}
    s_cbranch_scc1 kf_g1
    s_cmp_lg_u32 s3, 12
    s_cbranch_scc1 kf_g1
    v_mov_b32 v16, 0x7f7f
    v_mov_b32 v17, 0x7f7f
    v_mov_b32 v18, 0x7f7f
    v_mov_b32 v19, 0x7f7f
    v_lshlrev_b32 v20, 4, v1
    s_add_u32 s31, s30, {DUMMY*128}
    s_mov_b64 exec, 0xff
    buffer_store_dwordx4 v[16:19], v20, s[32:35], s31 offen sc1
    s_mov_b64 exec, -1
    kf_g1:
    ''')
    stamp(a, 4, 4)
    spin('kf_zg', 11, 16, L_FLAG, 3, 2)
    a('s_branch kf_B')

    a.reset()
    a.label('kf_aux')
    DS_, SR_, EV_, BA, RK_ = 32, 42, 52, 72, 82
    a(f'''
    s_setprio 3
    v_add_u32 v4, {-832*8}, v4
    v_add_u32 v8, {-832*16}, v5
    s_mul_i32 s76, s2, {CH*4}
    s_mul_i32 s82, s2, {CH*8}
    s_movk_i32 s31, {CH//2 + 832 - 576}
    s_cmp_eq_u32 s2, {NCH-1}
    s_cselect_b32 s31, {(E - (NCH-1)*CH)//2 + 832 - 576}, s31
    v_cmp_gt_u32 s[88:89], s31, v0
    s_sub_u32 s31, s31, 192
    v_cmp_gt_u32 s[90:91], s31, v0
    ''')
    for r in range(1, 5):
        a(f's_add_u32 s{76+r}, s76, {r*1536}')
        a(f's_add_u32 s{82+r}, s82, {r*3072}')
    a(f'''
    s_waitcnt lgkmcnt(0)
    ''')
    wsoff(a)
    if not opts['barlate']:
        a('s_barrier')
    stamp(a, 15, 30)
    srd(a, 56, 10, 11, E * 4)
    srd(a, 64, 8, 9, E * 4)
    srd(a, 68, 6, 7, E * 8)

    def rmask(r):
        if r >= 3:
            a(f's_mov_b64 exec, s[{88+2*(r-3)}:{89+2*(r-3)}]')
    for (base, d, so, w, va) in ((DS_, 56, 76, 2, 4), (SR_, 64, 76, 2, 4), (EV_, 68, 82, 4, 8)):
        for r in range(5):
            rmask(r)
            a(f'buffer_load_dwordx{w} {vr(base+w*r,w)}, v{va}, s[{d}:{d+3}], s{so + r} offen{" nt" if opts["ent"] else ""}')
        a('s_mov_b64 exec, -1')
    if opts['barlate']:
        a('s_barrier')
    stamp(a, 0, 30)
    lds_init()
    srd(a, 72, 24, 25, 256)
    srd(a, 32, 26, 27, WS_USED)
    srd(a, 40, 4, 5, N * 256)
    a(f's_mul_i32 s31, s2, {CHB}')
    a(f's_add_u32 s31, s31, {REC}')
    srd_ws(a, 44, 's31', CH * 12)
    a(f'''
    s_mov_b32 s52, 42800
    s_movk_i32 s54, {-BN}
    s_movk_i32 s55, {HIST}
    v_mov_b32 v17, 1
    v_add_u32 v9, {L_STG}, v8
    ''')
    NW = 0
    for r in range(5):
        a(f's_waitcnt vmcnt({NW + 14 - r})')
        rmask(r)
        for q in range(2):
            k = 2*r + q
            a(f'v_mul_u32_u24 v{BA+k}, s52, v{DS_+k}')
            a(f'v_lshrrev_b32 v{BA+k}, 24, v{BA+k}')
            a(f'v_mad_i32_i24 v{DS_+k}, v{BA+k}, s54, v{DS_+k}')
            a(f'v_lshl_add_u32 v{BA+k}, v{BA+k}, 2, s55')
            a(f'ds_add_rtn_u32 v{RK_+k}, v{BA+k}, v17')
    a(f'''
    s_mov_b64 exec, 1
    ds_add_u32 v11, v17 offset:{L_FLAG+8}
    s_mov_b64 exec, -1
    ''')
    stamp(a, 1, 30)
    a(f's_waitcnt vmcnt({NW + 5})')
    stamp(a, 7, 30, 2)
    for k in range(10):
        a(f'v_lshl_or_b32 v{SR_+k}, v{DS_+k}, 18, v{SR_+k}')
    spin('kf_s1', 11, 16, L_FLAG + 8, 3)
    stamp(a, 8, 30, 2)
    a(f'''
    ds_read_b32 v24, v7 offset:{HIST}
    s_waitcnt lgkmcnt(0)
    v_mov_b32 v25, v24
    ''')
    scan_incl(a, 25)
    a('v_sub_u32 v25, v25, v24')
    for k in range(10):
        a(f'ds_bpermute_b32 v{BA+k}, v{BA+k}, v25')
    a(f'''
    v_lshl_or_b32 v25, v24, 16, v25
    v_or_b32 v25, 0x80000000, v25
    s_mov_b32 s31, {L_STG}
    s_mov_b32 s52, {L_STG + CH*4}
    ''')
    stamp(a, 9, 30, 2)
    a(f's_waitcnt vmcnt({NW})')
    stamp(a, 10, 30, 2)
    for r in range(5):
        rmask(r)
        for q in range(2):
            k = 2*r + q
            a(f's_waitcnt lgkmcnt({min(15, 9 - k + 2*k)})')
            a(f'v_add_u32 v{BA+k}, v{BA+k}, v{RK_+k}')
            a(f'v_lshl_add_u32 v{RK_+k}, v{BA+k}, 2, s31')
            a(f'v_lshl_add_u32 v{BA+k}, v{BA+k}, 3, s52')
            a(f'ds_write_b32 v{RK_+k}, v{SR_+k}')
            a(f'ds_write_b64 v{BA+k}, {vr(EV_+2*k,2)}')
    a(f'''
    s_mov_b64 exec, 1
    ds_add_u32 v11, v17 offset:{L_FLAG+12}
    s_mov_b64 exec, -1
    ''')
    stamp(a, 11, 30, 2)
    spin('kf_s2', 11, 16, L_FLAG + 12, 3)
    stamp(a, 2, 30)
    for r in range(7):
        a(f'ds_read_b128 {vr(32+4*r,4)}, v9 offset:{r*3072}')
    for r in range(7):
        a(f's_movk_i32 s52, {r*3072}')
        a(f's_waitcnt lgkmcnt({6-r})')
        a(f'buffer_store_dwordx4 {vr(32+4*r,4)}, v8, s[44:47], s52 offen sc1')
    a(f'''
    v_mov_b32 v15, 1
    s_cmp_lg_u32 s3, 15
    s_cbranch_scc1 kf_a3
    {ZLOAD}
    kf_a3:
    s_waitcnt vmcnt(0)
    ''')
    stamp(a, 3, 30)
    zcheck(a, 'kf_za')
    a(f'''
    s_mov_b64 exec, 1
    ds_add_rtn_u32 v18, v11, v17 offset:{L_FLAG}
    s_mov_b64 exec, -1
    s_lshl_b32 s52, s2, 8
    s_add_u32 s52, s52, {OFF}
    s_waitcnt lgkmcnt(0)
    v_readfirstlane_b32 s31, v18
    s_cmp_lg_u32 s31, 2
    s_cbranch_scc1 kf_a4
    buffer_store_dword v25, v7, s[32:35], s52 offen sc1
    ''')
    stamp(a, 4, 30)
    a('s_branch kf_B')
    a('kf_a4:')
    spin('kf_zh', 11, 16, L_FLAG, 3, 2)

    K, EV, RK, BS = 16, 30, 58, 104
    UB, XB, XA, WC, SEL = 68, 84, 92, 96, 100
    G, IDX, EB, T = 16, 48, 52, 60
    UA = 8
    DEN, AGG, C, VS, VE, TMP = 104, 108, 112, 116, 117, 118
    assert 4 * U <= 32 and U % 2 == 0
    a.reset()
    a.label('kf_B')
    a('s_setprio 0')
    OLOAD = 'buffer_load_dword v7, v3, s[32:35], s31 offen sc1'
    a(f'''
    v_lshrrev_b32 v2, 2, v0
    v_lshlrev_b32 v3, 8, v2
    s_lshl_b32 s31, s29, 2
    s_add_u32 s31, s31, {OFF}
    {OLOAD}
    v_and_b32 v4, 7, v0
    v_lshrrev_b32 v5, 4, v1
    v_lshl_add_u32 v6, v4, 2, v5
    v_lshlrev_b32 v6, 1, v6
    ''')
    srd(a, 48, 16, 17, 1024)
    a('s_waitcnt lgkmcnt(0)')
    for i in range(4):
        a(f'buffer_load_ushort v{WC+i}, v6, s[48:51], s94 offen offset:{i*256}')
    srd_ws(a, 36, 's30', ROWS, 128)
    srd(a, 44, 22, 23, N * 256)
    a(f'''
    v_lshlrev_b32 v104, 2, v0
    v_mul_u32_u24 v107, {CHB}, v2
    v_add_u32 v107, {REC}, v107
    v_and_b32 v108, 3, v0
    v_lshlrev_b32 v108, 1, v108
    v_mov_b32 v16, {L_FLAG+4}
    v_mov_b32 v17, 1
    s_cmp_gt_u32 s3, 12
    s_waitcnt vmcnt(0)
    s_cbranch_scc1 kf_B1
    s_mov_b64 exec, 1
    ds_add_rtn_u32 v18, v16, v17
    s_lshl_b32 s52, s29, 2
    s_lshl_b32 s53, s28, 8
    s_add_u32 s52, s52, s53
    s_add_u32 s52, s52, {TF}
    s_waitcnt lgkmcnt(0)
    v_readfirstlane_b32 s53, v18
    s_cmp_lg_u32 s53, 12
    s_cbranch_scc1 kf_B1
    buffer_store_dword v17, off, s[32:35], s52 sc1
    kf_B1:
    s_mov_b64 exec, -1
    ''')
    stamp(a, 5)
    poll(a, 'kf_po', 7, OLOAD, 'v_cmp_gt_i32 vcc, 0, v7')
    stamp(a, 12, 126, 2)
    a(f'''
    v_cndmask_b32 v7, 0, v7, vcc
    v_bfe_u32 v109, v7, 16, 15
    v_and_b32 v7, 0xffff, v7
    v_add_u32 v7, v7, v108
    v_lshl_add_u32 v110, v7, 2, v107
    v_lshl_add_u32 v111, v7, 3, v107
    v_sub_u32 v108, v109, v108
    s_movk_i32 s95, {CH*4}
    ''')

    def M(r, q=0):
        b = 52 + 4*r + 2*q
        return f's[{b}:{b+1}]'
    for r in range(R):
        a(f'v_cmp_lt_i32 {M(r)}, {8*r}, v108')
    for r in range(R):
        a(f's_mov_b64 exec, {M(r)}')
        a(f'buffer_load_dwordx2 {vr(K+2*r,2)}, v110, s[32:35], 0 offen offset:{r*32} sc1')
    for r in range(R):
        a(f's_mov_b64 exec, {M(r)}')
        a(f'buffer_load_dwordx4 {vr(EV+4*r,4)}, v111, s[32:35], s95 offen offset:{r*64} sc1')
    a('s_mov_b64 exec, -1')
    stamp(a, 6)
    for r in range(R):
        a(f'v_cmp_lt_i32 {M(r,1)}, {8*r+1}, v108')
    a(f'''
    s_mov_b32 s95, {NLOG2E:#x}
    v_lshlrev_b32 v{WC}, 16, v{WC}
    v_lshlrev_b32 v{WC+1}, 16, v{WC+1}
    v_lshlrev_b32 v{WC+2}, 16, v{WC+2}
    v_lshlrev_b32 v{WC+3}, 16, v{WC+3}
    v_mul_f32 v{WC}, s95, v{WC}
    v_mul_f32 v{WC+1}, s95, v{WC+1}
    v_mul_f32 v{WC+2}, s95, v{WC+2}
    v_mul_f32 v{WC+3}, s95, v{WC+3}
    v_cvt_pk_bf16_f32 v112, v{WC}, v{WC+1}
    v_cvt_pk_bf16_f32 v113, v{WC+2}, v{WC+3}
    v_and_b32 v114, 8, v1
    v_cmp_eq_u32 vcc, 0, v114
    v_cndmask_b32 v{WC}, 0, v112, vcc
    v_cndmask_b32 v{WC+1}, 0, v113, vcc
    v_cndmask_b32 v{WC+2}, v112, 0, vcc
    v_cndmask_b32 v{WC+3}, v113, 0, vcc
    v_and_b32 v114, 15, v1
    v_lshlrev_b32 v115, 2, v5
    v_sub_u32 v114, v114, v115
    v_mov_b32 v115, 0x3f80
    ''')
    for q in range(4):
        a(f'v_cmp_eq_u32 vcc, {q}, v114')
        a(f'v_cndmask_b32 v{SEL+q}, 0, v115, vcc')
    a(f'''
    v_mov_b32 v8, 1
    v_cmp_gt_u32 vcc, 49, v1
    v_cndmask_b32 v9, 0, 2, vcc
    v_mul_u32_u24 v10, 43, v1
    v_lshrrev_b32 v10, 7, v10
    v_min_u32 v10, 15, v10
    v_mul_u32_u24 v10, {GAP}, v10
    v_lshlrev_b32 v11, 2, v1
    v_cmp_gt_u32 vcc, {BN}, v0
    s_mov_b64 s[92:93], vcc
    v_cmp_lt_u32 vcc, {8*R}, v109
    s_mov_b64 exec, vcc
    v_mov_b32 v12, {L_BL}
    v_mov_b32 v13, 0x4000
    ds_max_u32 v12, v13
    ''')
    for r in range(R):
        a(f's_mov_b64 exec, {M(r)}')
        if r >= 3:
            a('s_cbranch_execz kf_p1e')
        a(f's_waitcnt vmcnt({R - 1 - r + R})')
        for q in range(2):
            if q:
                a(f's_mov_b64 exec, {M(r,q)}')
            a(f'v_lshrrev_b32 v12, 16, v{K+2*r+q}')
            a(f'ds_add_rtn_u32 v{RK+2*r+q}, v12, v8')
    a(f'''
    kf_p1e:
    s_mov_b64 exec, -1
    s_waitcnt lgkmcnt(0)
    ''')
    stamp(a, 7)
    a('s_barrier')
    stamp(a, 8)
    a(f'''
    s_cmp_gt_u32 s3, 6
    s_cbranch_scc1 kf_z2
    s_mov_b64 exec, s[92:93]
    ds_read_b32 v12, v104
    s_waitcnt lgkmcnt(0)
    v_min_u32 v13, 63, v12
    v_sub_u32 v13, 63, v13
    v_lshlrev_b32 v13, 2, v13
    ds_add_rtn_u32 v14, v13, v8 offset:{L_DH}
    s_mov_b64 exec, -1
    s_waitcnt lgkmcnt(0)
    s_branch kf_b2
    kf_z2:
    s_cmp_eq_u32 s3, 7
    s_cbranch_scc1 kf_b2
    v_mov_b32 v12, 0
    v_mov_b32 v13, 0
    v_mov_b32 v14, 0
    v_mov_b32 v15, 0
    v_lshlrev_b32 v105, 4, v0
    v_add_u32 v105, {L_E - 8192}, v105
    ''')
    for i in range(8):
        a(f'ds_write_b128 v105, v[12:15] offset:{i*8192}')
    a(f'''
    kf_b2:
    s_barrier
    s_cmp_gt_u32 s3, 6
    s_cbranch_scc1 kf_b3
    ds_read_b32 v15, v11 offset:{L_DH}
    s_waitcnt lgkmcnt(0)
    v_mov_b32 v112, v15
    ''')
    scan_incl(a, 112)
    a(f'''
    v_sub_u32 v112, v112, v15
    ds_bpermute_b32 v15, v13, v112
    s_waitcnt lgkmcnt(0)
    s_mov_b64 exec, s[92:93]
    v_add_u32 v14, v14, v15
    v_lshrrev_b32 v15, 3, v14
    v_and_b32 v14, 7, v14
    v_lshrrev_b32 v112, 4, v15
    v_and_b32 v113, 15, v15
    v_xor_b32 v114, 15, v113
    v_cmp_lt_u32 vcc, 15, v15
    v_cndmask_b32 v113, v113, v114, vcc
    v_mad_u32_u24 v15, v113, 3, v112
    v_lshlrev_b32 v13, 2, v15
    ds_max_u32 v13, v12 offset:{L_BL}
    v_lshlrev_b32 v14, 2, v14
    v_lshl_add_u32 v112, v15, 5, v14
    ds_write_b32 v112, v0 offset:{L_NID}
    s_mov_b64 exec, -1
    s_waitcnt lgkmcnt(0)
    kf_b3:
    s_barrier
    ''')
    stamp(a, 9)
    TLOAD = 'buffer_load_dword v15, v11, s[32:35], s81 offen sc1'
    a(f'''
    s_mul_i32 s91, s3, 3
    s_lshl_b32 s95, s91, 5
    v_lshrrev_b32 v116, 3, v1
    v_lshlrev_b32 v116, 2, v116
    v_add_u32 v117, s95, v116
    ds_read_b32 v112, v11 offset:{L_BL}
    ''')
    for k in range(4):
        a(f'ds_read_b32 v{XA+k}, v117 offset:{L_NID + 32*k}')
    a(f'''
    s_mul_i32 s31, s29, {BN*256}
    s_add_u32 s31, s31, s94
    s_lshl_b32 s81, s28, 8
    s_add_u32 s81, s81, {TF}
    v_lshlrev_b32 v118, 4, v4
    v_lshlrev_b32 v119, 3, v4
    s_waitcnt lgkmcnt(4)
    v_max_u32 v112, v112, v9
    v_mov_b32 v113, v112
    ''')
    scan_incl(a, 113)
    a(f'''
    v_readlane_b32 s90, v113, 63
    v_sub_u32 v113, v113, v112
    v_add_u32 v113, v113, v10
    s_cmp_gt_u32 s90, {CAP - 16*GAP if not opts['force_slow'] else 0}
    s_cbranch_scc1 kf_slow
    ds_bpermute_b32 v114, v13, v113
    s_mov_b32 s95, {L_U}
    s_waitcnt lgkmcnt(1)
    ''')
    for k in range(4):
        a(f'v_xor_b32 v{UA+k}, v{XA+k}, v4')
        a(f'v_and_b32 v{UA+k}, 7, v{UA+k}')
        a(f'v_lshl_add_u32 v{UA+k}, v{UA+k}, 4, s95')
        a(f'v_lshl_add_u32 v{UA+k}, v{XA+k}, 7, v{UA+k}')
        a(f'v_lshl_add_u32 v{XA+k}, v{XA+k}, 8, v119')
        a(f'buffer_load_dwordx2 {vr(XB+2*k,2)}, v{XA+k}, s[40:43], s31 offen')
    a(f'''
    v_lshlrev_b32 v120, 2, v1
    buffer_load_dword v15, v120, s[32:35], s81 offen sc1
    v_readlane_b32 s87, v112, s91
    v_readlane_b32 s86, v113, s91
    s_add_u32 s91, s91, 1
    v_readlane_b32 s88, v112, s91
    s_add_u32 s91, s91, 1
    v_readlane_b32 s89, v112, s91
    s_add_u32 s91, s91, 1
    v_readlane_b32 s90, v112, s91
    s_mov_b64 exec, s[92:93]
    s_waitcnt lgkmcnt(0)
    v_lshl_add_u32 v114, v114, 5, v14
    ds_write_b32 v104, v114
    s_mov_b64 exec, -1
    s_waitcnt lgkmcnt(0)
    s_barrier
    ''')
    TLOAD = 'buffer_load_dword v15, v120, s[32:35], s81 offen sc1'
    stamp(a, 10)
    for r in range(R):
        a(f's_mov_b64 exec, {M(r)}')
        if r >= 3:
            a('s_cbranch_execz kf_p5a')
        for q in range(2):
            k = 2*r + q
            if q:
                a(f's_mov_b64 exec, {M(r,q)}')
            a(f'v_lshrrev_b32 v12, 16, v{K+k}')
            a(f'ds_read_b32 v{BS+k}, v12')
    a('kf_p5a:')
    a(f's_waitcnt vmcnt(5) lgkmcnt(0)')
    for r in range(R):
        a(f's_mov_b64 exec, {M(r)}')
        if r >= 3:
            a('s_cbranch_execz kf_p5b')
        for q in range(2):
            k = 2*r + q
            if q:
                a(f's_mov_b64 exec, {M(r,q)}')
            a(f'v_lshl_add_u32 v12, v{RK+k}, 5, v{BS+k}')
            a(f'v_lshlrev_b32 v13, 1, v12')
            a(f'ds_write_b16 v12, v{K+k} offset:{L_S}')
            a(f'ds_write_b64 v13, {vr(EV+4*r+2*q,2)} offset:{L_E}')
    a(f'''
    kf_p5b:
    s_mov_b64 exec, -1
    ''')
    for k in range(4):
        a(f'ds_read_b128 {vr(UB+4*k,4)}, v{UA+k}')
    a(f'''
    s_mov_b32 s76, 0x22221111
    s_mov_b32 s77, 0x88884444
    s_mov_b32 s78, 1.0
    s_mov_b32 s79, 1.0
    s_lshl_b32 s95, s86, 5
    s_add_u32 s95, s95, {L_S}
    v_lshrrev_b32 v{VS}, 3, v1
    v_lshl_add_u32 v{VS}, v{VS}, 2, s95
    s_lshl_b32 s95, s86, 6
    s_add_u32 s95, s95, {L_E}
    v_and_b32 v{VE}, 12, v1
    v_lshlrev_b32 v{VE}, 2, v{VE}
    v_add_u32 v{VE}, s95, v{VE}
    s_getpc_b64 s[84:85]
    kf_pc:
    s_add_u32 s84, s84, kf_evA0-kf_pc
    s_addc_u32 s85, s85, 0
    s_sub_u32 s86, s87, 2
    s_waitcnt vmcnt(0)
    ''')
    stamp(a, 11)
    poll(a, 'kf_pt', 15, TLOAD, 'v_cmp_ne_u32 vcc, 0, v15')
    a(f'''
    s_mov_b32 s80, {EPS:#x}
    s_mov_b32 s81, {EPS:#x}
    s_waitcnt lgkmcnt(0)
    s_barrier
    ''')
    stamp(a, 12)
    if opts['prio']:
        a('s_setprio 3')
    for i in range(U - 1):
        a(f'ds_read_b32 v{DEN+i}, v{VS} offset:{i*32}')
    for i in range(8):
        a(f'v_mov_b32 v{EB+i}, 0')
    a(f'v_mov_b32 v{IDX+1}, v118')
    a(f'v_mov_b32 v{IDX+3}, v118')
    a(f'''
    s_mov_b64 exec, s[76:77]
    ds_read_b128 {vr(EB,4)}, v{VE}
    ds_read_b128 {vr(EB+4,4)}, v{VE} offset:64
    s_mov_b64 exec, -1
    ''')
    for i in range(U - 1):
        a(f's_waitcnt lgkmcnt({U-2-i+2})')
        a(f'v_mov_b32 v{IDX+2}, v{DEN+i}')
        a(f'buffer_load_dwordx4 {vr(G+4*i,4)}, {vr(IDX+2,2)}, s[36:39], 0 idxen offen{GS}')
    a(f'ds_read_b32 v{IDX}, v{VS} offset:{(U-1)*32}')
    for r in range(4):
        a(f'v_lshlrev_b32 v{C+r}, 16, v{UB+r}')
        a(f'v_mov_b32 v{DEN+r}, s80')
        a(f'v_mov_b32 v{AGG+r}, 0')
    a(f'''
    s_waitcnt vmcnt({U-2}) lgkmcnt(1)
    v_mfma_f32_16x16x32_bf16 {vr(T,4)}, {vr(EB,4)}, {vr(WC,4)}, {vr(C,4)}
    v_mfma_f32_16x16x32_bf16 {vr(T,4)}, {vr(SEL,4)}, {vr(G,4)}, {vr(T,4)}
    s_mov_b64 exec, s[76:77]
    ds_read_b128 {vr(EB,4)}, v{VE} offset:128
    s_mov_b64 exec, -1
    s_nop 4
    ''')
    a.label('kf_loop')
    for k in range(U):
        Tc, Tn = T + 4*(k & 1), T + 4*((k+1) & 1)
        En = EB + 4*((k+1) & 1)
        a(f's_waitcnt vmcnt({U-3}) lgkmcnt(1)')
        a(f'v_mfma_f32_16x16x32_bf16 {vr(Tn,4)}, {vr(En,4)}, {vr(WC,4)}, {vr(C,4)}')
        a(f'v_exp_f32 v{Tc}, v{Tc}')
        a(f'v_exp_f32 v{Tc+1}, v{Tc+1}')
        a(f'v_mfma_f32_16x16x32_bf16 {vr(Tn,4)}, {vr(SEL,4)}, {vr(G+4*((k+1)%U),4)}, {vr(Tn,4)}')
        a(f'v_exp_f32 v{Tc+2}, v{Tc+2}')
        a(f'v_exp_f32 v{Tc+3}, v{Tc+3}')
        a(f'buffer_load_dwordx4 {vr(G+4*((k+U-1)%U),4)}, {vr(IDX+2*(k&1),2)}, s[36:39], 0 idxen offen{GS}')
        a(f'v_pk_add_f32 {vr(Tc,2)}, {vr(Tc,2)}, s[78:79]')
        a(f'ds_read_b32 v{IDX+2*((k+1)&1)}, v{VS} offset:{(k+U)*32}')
        a(f'v_pk_add_f32 {vr(Tc+2,2)}, {vr(Tc+2,2)}, s[78:79]')
        a(f's_mov_b64 exec, s[76:77]')
        a(f'ds_read_b128 {vr(En,4)}, v{VE} offset:{(k+3)*64}')
        a(f's_mov_b64 exec, -1')
        for r in range(4):
            a(f'v_rcp_f32 v{Tc+r}, v{Tc+r}')
        if k == U - 1:
            a(f'v_add_u32 v{VS}, {U*32}, v{VS}')
            a(f'v_add_u32 v{VE}, {U*64}, v{VE}')
        a(f's_sub_u32 s86, s86, 1')
        for h in range(2):
            a(f'v_pk_add_f32 {vr(DEN+2*h,2)}, {vr(DEN+2*h,2)}, {vr(Tc+2*h,2)}')
            a(f'v_pk_fma_f32 {vr(AGG+2*h,2)}, {vr(Tc+2*h,2)}, {vr(G+4*k+2*h,2)}, {vr(AGG+2*h,2)}')
        a(f's_cbranch_scc1 kf_tr{k}')
        a.label(f'kf_r{k}')
    a('s_branch kf_loop')
    for k in range(U):
        a.label(f'kf_tr{k}')
        a('s_swappc_b64 s[82:83], s[84:85]')
        a(f's_branch kf_r{k}')

    def epilogue(den, agg, ub, xb, xa):
        for r in range(4):
            a(f'v_rcp_f32 v{den+r}, v{den+r}')
        for r in range(4):
            a(f'v_and_b32 v{TMP+r}, 0xffff0000, v{ub+r}')
        for h in range(2):
            a(f'v_pk_fma_f32 {vr(agg+2*h,2)}, {vr(agg+2*h,2)}, {vr(den+2*h,2)}, {vr(TMP+2*h,2)}')
        for h in range(2):
            a(f'v_lshlrev_b32 v{TMP+2*h}, 16, v{xb+h}')
            a(f'v_and_b32 v{TMP+2*h+1}, 0xffff0000, v{xb+h}')
        for r in range(4):
            a(f'v_max_f32 v{agg+r}, 0, v{agg+r}')
        for h in range(2):
            a(f'v_pk_add_f32 {vr(agg+2*h,2)}, {vr(agg+2*h,2)}, {vr(TMP+2*h,2)}')
        for h in range(2):
            a(f'v_cvt_pk_bf16_f32 v{TMP+4+h}, v{agg+2*h}, v{agg+2*h+1}')
        a(f'buffer_store_dwordx2 {vr(TMP+4,2)}, v{xa}, s[44:47], s31 offen')

    for b in range(4):
        if b < 3:
            a.reset()
            a.label(f'kf_evA{b}')
            for r in range(4):
                a(f'v_lshlrev_b32 v{C+r}, 16, v{UB+4*(b+1)+r}')
            a(f's_mov_b32 s86, 0')
            a(f's_add_u32 s84, s84, kf_evB{b}-kf_evA{b}')
            a(f's_addc_u32 s85, s85, 0')
            a('s_setpc_b64 s[82:83]')
        a.reset()
        a.label(f'kf_evB{b}')
        epilogue(DEN, AGG, UB+4*b, XB+2*b, XA+b)
        if b == 3:
            stamp(a, 14)
            a.label('kf_done')
            stamp_dump(a)
            a.label('kf_exit')
            a('s_endpgm')
            break
        if b == 2:
            stamp(a, 13)
            a('s_cmp_lg_u32 s3, 15')
            a('s_cbranch_scc1 kf_done')
        if opts['prio']:
            a(f's_setprio {2-b}')
        for r in range(4):
            a(f'v_mov_b32 v{DEN+r}, s80')
            a(f'v_mov_b32 v{AGG+r}, 0')
        nxt = f'kf_evA{b+1}' if b < 2 else 'kf_evB3'
        a(f's_sub_u32 s86, s{88+b}, {2 if b < 2 else 1}')
        a(f's_add_u32 s84, s84, {nxt}-kf_evB{b}')
        a(f's_addc_u32 s85, s85, 0')
        a('s_setpc_b64 s[82:83]')

    a.reset()
    W = 16
    a.label('kf_slow')
    a(f'''
    v_lshlrev_b32 v120, 2, v1
    {TLOAD}
    s_waitcnt vmcnt(0) lgkmcnt(0)
    ''')
    poll(a, 'kf_ps', 15, TLOAD, 'v_cmp_ne_u32 vcc, 0, v15')
    a(f'''
    s_mov_b32 s80, {EPS:#x}
    s_mov_b32 s81, {EPS:#x}
    s_barrier
    v_mov_b32 v8, 0
    v_mov_b32 v9, 0
    v_mov_b32 v10, 0
    v_mov_b32 v11, 0
    v_lshlrev_b32 v105, 4, v0
    v_add_u32 v106, {L_ACC + 49152}, v105
    ''')
    for i in range(3):
        a(f'ds_write_b128 v105, v[8:11] offset:{L_ACC + i*16384}')
    for i in range(3):
        a(f'ds_write_b128 v106, v[8:11] offset:{i*16384}')
    a(f'''
    v_cmp_gt_u32 vcc, 0x80, v0
    s_mov_b64 exec, vcc
    ds_write_b128 v106, v[8:11] offset:{3*16384}
    s_mov_b64 exec, -1
    ''')
    for i in range(4):
        a(f'buffer_load_dwordx2 {vr(32+2*i,2)}, v119, s[48:51], s94 offen offset:{i*256}')
    a(f's_mov_b32 s60, {NLOG2E:#x}')
    a(f's_waitcnt vmcnt(0)')
    for i in range(4):
        for h in range(2):
            a(f'v_lshlrev_b32 v{W+4*i+2*h}, 16, v{32+2*i+h}')
            a(f'v_and_b32 v{W+4*i+2*h+1}, 0xffff0000, v{32+2*i+h}')
    for i in range(16):
        a(f'v_mul_f32 v{W+i}, s60, v{W+i}')
    a(f'''
    v_lshrrev_b32 v2, 3, v1
    v_mov_b32 v41, v118
    s_lshl_b32 s61, s29, 2
    s_add_u32 s61, s61, {OFF}
    s_mov_b32 s62, s3
    s_mov_b32 s95, {L_U}
    s_waitcnt lgkmcnt(0)
    s_barrier
    kf_s_chunk:
    s_lshl_b32 s63, s62, 8
    v_mov_b32 v32, s63
    buffer_load_dword v32, v32, s[32:35], s61 offen sc1
    s_mul_i32 s64, s62, {CHB}
    s_add_u32 s64, s64, {REC}
    s_add_u32 s65, s64, {CH*4}
    s_waitcnt vmcnt(0)
    v_readfirstlane_b32 s66, v32
    s_bfe_u32 s67, s66, 0xf0010
    s_and_b32 s66, s66, 0xffff
    s_add_u32 s67, s67, s66
    kf_s_step:
    s_cmp_ge_u32 s66, s67
    s_cbranch_scc1 kf_s_next
    v_add_u32 v32, s66, v2
    v_cmp_gt_u32 vcc, s67, v32
    s_mov_b64 exec, vcc
    v_lshlrev_b32 v33, 2, v32
    v_lshlrev_b32 v34, 3, v32
    buffer_load_dword v35, v33, s[32:35], s64 offen sc1
    buffer_load_dwordx2 v[36:37], v34, s[32:35], s65 offen sc1
    s_waitcnt vmcnt(0)
    v_and_b32 v40, 0xffff, v35
    v_lshrrev_b32 v35, 16, v35
    v_and_b32 v33, 28, v35
    v_lshlrev_b32 v33, 2, v33
    v_xor_b32 v33, v33, v118
    v_lshl_add_u32 v33, v35, 5, v33
    v_add_u32 v33, s95, v33
    buffer_load_dwordx4 v[44:47], v[40:41], s[36:39], 0 idxen offen sc1
    ds_read_b128 v[48:51], v33
    v_lshlrev_b32 v52, 16, v36
    v_and_b32 v53, 0xffff0000, v36
    v_lshlrev_b32 v54, 16, v37
    v_and_b32 v55, 0xffff0000, v37
    v_lshl_add_u32 v34, v35, 6, v118
    s_waitcnt vmcnt(0) lgkmcnt(0)
    ''')
    for r in range(4):
        a(f'v_lshlrev_b32 v{56+r}, 16, v{44+r}')
        a(f'v_lshlrev_b32 v60, 16, v{48+r}')
        a(f'v_add_f32 v{56+r}, v{56+r}, v60')
        for i in range(4):
            a(f'v_fmac_f32 v{56+r}, v{52+i}, v{W+4*i+r}')
        a(f'v_exp_f32 v{56+r}, v{56+r}')
        a(f'v_add_f32 v{56+r}, 1.0, v{56+r}')
        a(f'v_rcp_f32 v{56+r}, v{56+r}')
        a(f'v_mul_f32 v{44+r}, v{56+r}, v{44+r}')
        a(f'ds_add_f32 v34, v{56+r} offset:{L_ACC + 4*r}')
        a(f'ds_add_f32 v34, v{44+r} offset:{L_ACC + 128 + 4*r}')
    a(f'''
    s_mov_b64 exec, -1
    s_add_u32 s66, s66, 8
    s_branch kf_s_step
    kf_s_next:
    s_add_u32 s62, s62, 16
    s_cmp_lt_u32 s62, {NCH}
    s_cbranch_scc1 kf_s_chunk
    s_waitcnt lgkmcnt(0)
    s_barrier
    s_mov_b32 s62, 0
    v_lshrrev_b32 v2, 3, v0
    kf_s_fin:
    v_add_u32 v32, s62, v2
    v_cmp_gt_u32 vcc, {BN}, v32
    s_mov_b64 exec, vcc
    s_cbranch_execz kf_exit
    v_xor_b32 v33, v32, v4
    v_and_b32 v33, 7, v33
    v_lshl_add_u32 v33, v33, 4, s95
    v_lshl_add_u32 v33, v32, 7, v33
    v_lshl_add_u32 v34, v32, 8, v118
    v_lshl_add_u32 v35, v32, 8, v119
    ds_read_b128 v[44:47], v33
    buffer_load_dwordx2 v[48:49], v35, s[40:43], s31 offen
    ds_read_b128 v[52:55], v34 offset:{L_ACC}
    ds_read_b128 v[56:59], v34 offset:{L_ACC + 128}
    v_mov_b32 v60, v118
    v_mov_b32 v61, v119
    s_waitcnt vmcnt(0) lgkmcnt(0)
    v_pk_add_f32 v[52:53], v[52:53], s[80:81]
    v_pk_add_f32 v[54:55], v[54:55], s[80:81]
    ''')
    epilogue(52, 56, 44, 48, 35)
    a(f'''
    v_mov_b32 v118, v60
    v_mov_b32 v119, v61
    s_add_u32 s62, s62, 128
    s_branch kf_s_fin
    ''')


def descriptor(name, vgpr, sgpr=102):
    acc = (vgpr + 3) // 4 * 4
    return f'''.p2align 6
.amdhsa_kernel {name}
  .amdhsa_next_free_vgpr {vgpr}
  .amdhsa_next_free_sgpr {sgpr}
  .amdhsa_accum_offset {acc}
  .amdhsa_group_segment_fixed_size 0
  .amdhsa_kernarg_size 96
  .amdhsa_user_sgpr_count 2
  .amdhsa_user_sgpr_kernarg_segment_ptr 1
  .amdhsa_system_sgpr_workgroup_id_x 1
.end_amdhsa_kernel
'''


def main():
    ref = open(f'cdna_kernels/{NAME}.s.ref').read().split('\n')
    head = [l for l in ref if l.startswith(';') and '@launch' not in l]
    out = '\n'.join(head) + '\n'
    out += f'; @launch kernel=kf_kernel grid=(256,1,1) block=(1024,1,1) lds={LDS + (1024 if opts["stamps"] else 0)}\n'
    out += '.amdgcn_target "amdgcn-amd-amdhsa--gfx950"\n.text\n'
    a = Asm()
    gen(a)
    out += a.text()
    out += '.section .rodata,"a"\n'
    out += descriptor('kf_kernel', 128)
    open(sys.argv[1], 'w').write(out)


main()
```

```python
import sys, struct, os
sys.path.insert(0, os.path.dirname(os.path.abspath(__file__)))
from asmlib import Asm, vr, sr

NAME = 'standalone__edge_featured_mpnn_gatedgcn__graph'
N, E = 25000, 400000
NB, BN = 64, 392
ROWS = 25096
SL = ROWS * 128
DUMMY = 25088
CH = 1564
NCH = 256
CHB = 18816
REC = 4 * SL
OFF = REC + NCH * CHB
TF = OFF + NB * 1024
WS_USED = TF + 1024
NZ = 17
NLOG2E = struct.unpack('<I', struct.pack('<f', -1.4426950408889634))[0]
EPS = struct.unpack('<I', struct.pack('<f', 1e-6))[0]
R = 7

L_CNT, L_DH, L_BL, L_FLAG, L_NID, HIST = 0, 1600, 1856, 2112, 2176, 3840
L_S, L_E = 4096, 36864
L_W, L_STG = L_E, L_E + 32768
L_U = 104448
LDS = L_U + 416 * 128
CAP = 1024
L_ACC = 4096
SPIN = 0x8000

opts = dict(U=8, force_slow=0, stamps=0, prio=1, x=0, gsc1=1, line=0, sleep=2, xdelay=0, barlate=1, xw=4, xrel=2, tsc=1, xnt=0, wsoff=0, ent=0, map=0, single=0)
for a_ in sys.argv[2:]:
    k, v = a_.split('=')
    opts[k] = int(v)
U = opts['U']
GAP = U
GS = ' sc1' if opts['gsc1'] else ''


def srd(a, r, lo, hi, nbytes):
    a(f's_mov_b32 s{r}, s{lo}')
    a(f's_and_b32 s{r+1}, s{hi}, 0xffff')
    a(f's_mov_b32 s{r+2}, {nbytes}')
    a(f's_mov_b32 s{r+3}, 0x00020000')


def srd_ws(a, r, off, nbytes, stride=0):
    a(f's_add_u32 s{r}, s26, {off}')
    a(f's_addc_u32 s{r+1}, s27, 0')
    a(f's_and_b32 s{r+1}, s{r+1}, 0xffff')
    if stride:
        a(f's_or_b32 s{r+1}, s{r+1}, {stride << 16}')
    a(f's_mov_b32 s{r+2}, {nbytes}')
    a(f's_mov_b32 s{r+3}, 0x00020000')


def wsoff(a):
    if opts['wsoff']:
        a(f's_add_u32 s26, s26, {opts["wsoff"] << 20}')
        a('s_addc_u32 s27, s27, 0')


def scan_incl(a, v):
    for sh in (1, 2, 4, 8):
        a(f'v_add_u32_dpp v{v}, v{v}, v{v} row_shr:{sh} row_mask:0xf bank_mask:0xf bound_ctrl:1')
    a(f'v_add_u32_dpp v{v}, v{v}, v{v} row_bcast:15 row_mask:0xa bank_mask:0xf')
    a(f'v_add_u32_dpp v{v}, v{v}, v{v} row_bcast:31 row_mask:0xc bank_mask:0xf')


def stamp(a, idx, vt=126, grp=1):
    if not opts['stamps']:
        return
    if opts['stamps'] != grp and 7 <= idx <= 14:
        return
    a(f'''
    s_memrealtime s[96:97]
    s_mov_b64 s[100:101], exec
    s_mov_b64 exec, 1
    v_mov_b32 v{vt+1}, s98
    s_waitcnt lgkmcnt(0)
    v_mov_b32 v{vt}, s96
    ds_write_b32 v{vt+1}, v{vt} offset:{idx*4}
    s_mov_b64 exec, s[100:101]
    ''')


def stamp_init(a):
    if not opts['stamps']:
        return
    a(f'''
    s_lshl_b32 s98, s3, 6
    s_add_u32 s98, s98, {LDS}
    v_lshl_add_u32 v30, v1, 2, s98
    v_mov_b32 v31, -1
    s_mov_b64 exec, 0xffff
    ds_write_b32 v30, v31
    s_mov_b64 exec, -1
    ''')


def stamp_dump(a):
    if not opts['stamps']:
        return
    a(f'''
    s_waitcnt vmcnt(0)
    s_mov_b64 exec, 0xffff
    v_lshl_add_u32 v30, v1, 2, s98
    ds_read_b32 v31, v30
    s_lshl_b32 s96, s99, 4
    s_or_b32 s96, s96, s3
    s_lshl_b32 s96, s96, 6
    s_add_u32 s96, s96, {64 << 20}
    v_lshl_add_u32 v30, v1, 2, s96
    s_waitcnt lgkmcnt(0)
    global_store_dword v30, v31, s[26:27]
    ''')


def poll(a, name, v, load, cmp):
    a(f'''
    s_mov_b32 s80, {SPIN}
    {name}:
    {cmp}
    s_cmp_eq_u64 vcc, -1
    s_cbranch_scc1 {name}_ok
    s_sub_u32 s80, s80, 1
    s_cbranch_scc1 {name}_ok
    s_sleep {opts['sleep']}
    {load}
    s_waitcnt vmcnt(0)
    s_branch {name}
    {name}_ok:
    ''')


ZLOAD = 'buffer_load_dword v15, v14, s[72:75], 0 offen sc1'


def zcheck(a, name):
    poll(a, name, 15, ZLOAD, 'v_cmp_ne_u32 vcc, 0, v15')


MAPS = ['''s_and_b32 s28, s2, 3
    s_bfe_u32 s29, s2, 0x10002
    s_lshl_b32 s29, s29, 5
    s_lshr_b32 s30, s2, 3
    s_add_u32 s29, s29, s30''', '''s_bfe_u32 s28, s2, 0x20003
    s_and_b32 s29, s2, 7
    s_lshl_b32 s29, s29, 3
    s_lshr_b32 s30, s2, 5
    s_add_u32 s29, s29, s30''']


def gen(a):
    a.raw('.globl kf_kernel\n.p2align 8\n.type kf_kernel,@function')
    a.label('kf_kernel')
    a(f'''
    s_load_dwordx16 s[4:19], s[0:1], 0
    s_load_dwordx8 s[20:27], s[0:1], 64
    s_cmp_ge_u32 s2, 256
    s_cbranch_scc1 kf_exit
    v_lshrrev_b32 v1, 6, v0
    v_readfirstlane_b32 s3, v1
    v_and_b32 v1, 63, v0
    s_mov_b32 s99, s2
    {MAPS[opts['map']]}
    s_mul_i32 s30, s28, {SL}
    s_lshl_b32 s94, s28, 6
    v_lshlrev_b32 v4, 3, v0
    v_lshlrev_b32 v5, 4, v0
    v_and_b32 v2, 15, v1
    v_lshrrev_b32 v3, 4, v1
    v_min_u32 v14, {NZ-1}, v1
    v_lshlrev_b32 v14, 2, v14
    v_lshlrev_b32 v7, 2, v1
    v_mov_b32 v11, 0
    v_lshlrev_b32 v25, 2, v0
    ds_write_b32 v25, v11
    ''')
    stamp_init(a)
    a('''
    s_cmp_gt_u32 s3, 12
    s_cbranch_scc1 kf_aux
    ''')
    X = 32

    def lds_init():
        a(f'''
        v_mov_b32 v24, {DUMMY}
        v_mov_b32 v25, {DUMMY}
        v_mov_b32 v26, {DUMMY}
        v_mov_b32 v27, {DUMMY}
        ''')
        for i in range(2):
            a(f'ds_write_b128 v5, v[24:27] offset:{L_S + i*16384}')

    def spin(name, vaddr, vt, off, n, sleep=0):
        a(f'''
        {name}:
        ds_read_b32 v{vt}, v{vaddr} offset:{off}
        s_waitcnt lgkmcnt(0)
        v_readfirstlane_b32 s53, v{vt}
        s_cmp_ge_u32 s53, {n}
        s_cbranch_scc1 {name}_ok
        ''')
        if sleep:
            a(f's_sleep {sleep}')
        a(f'''
        s_branch {name}
        {name}_ok:
        ''')

    a(f'''
    v_lshrrev_b32 v22, 2, v1
    v_lshrrev_b32 v9, 4, v1
    v_and_b32 v9, 2, v9
    v_and_b32 v10, 3, v1
    v_xor_b32 v9, v9, v10
    v_lshlrev_b32 v9, 4, v9
    v_lshl_add_u32 v22, v22, 8, v9
    v_mov_b32 v16, 0
    v_mov_b32 v17, 0
    v_mov_b32 v18, 0
    v_mov_b32 v19, 0
    v_lshlrev_b32 v20, 4, v1
    v_mov_b32 v21, 1
    s_lshl_b32 s52, s2, 12
    s_add_u32 s52, s52, {OFF}
    s_and_b32 s64, s3, 7
    s_lshl_b32 s65, s64, 12
    s_add_u32 s65, s65, s94
    s_lshl_b32 s64, s64, 10
    s_add_u32 s64, s64, {L_W}
    s_waitcnt lgkmcnt(0)
    ''')
    wsoff(a)
    srd(a, 32, 26, 27, WS_USED)
    srd(a, 72, 24, 25, 256)
    a(f'''
    s_cmp_lt_u32 s3, 8
    s_cbranch_scc1 kf_gw
    s_cmp_lg_u32 s3, 12
    s_cbranch_scc1 kf_g0
    s_cmp_ge_u32 s2, {NZ}
    s_cbranch_scc1 kf_g0
    s_setprio 3
    ''')
    for i in range(4):
        a(f'buffer_store_dwordx4 v[16:19], v20, s[32:35], s52 offen offset:{i*1024} sc1')
    a(f'''
    s_barrier
    s_lshl_b32 s52, s2, 2
    s_mov_b64 exec, 1
    s_waitcnt vmcnt(0)
    buffer_store_dword v21, off, s[72:75], s52 sc1
    s_mov_b64 exec, -1
    s_setprio 0
    s_branch kf_g2
    kf_gw:
    ''')
    for m, p in enumerate((14, 20, 12, 18)):
        srd(a, 60, p, p + 1, 32768)
        a(f's_add_u32 m0, s64, {m*8192}')
        a(f'buffer_load_dwordx4 v22, s[60:63], s65 offen lds')
    a(f'''
    kf_g0:
    s_barrier
    kf_g2:
    ''')
    stamp(a, 15, 30)
    lds_init()
    a(f'''
    v_and_b32 v6, 7, v2
    v_lshlrev_b32 v6, 8, v6
    v_lshl_add_u32 v6, v3, 4, v6
    v_lshrrev_b32 v12, 3, v2
    v_lshl_add_u32 v6, v12, 6, v6
    s_mul_i32 s62, s29, {BN*256}
    s_add_u32 s58, s62, {BN*256}
    s_min_u32 s58, s58, {N*256}
    s_lshl_b32 s63, s3, 13
    s_add_u32 s62, s62, s63
    s_add_u32 s63, s62, 0x1000
    s_mov_b32 s56, s4
    s_and_b32 s57, s5, 0xffff
    s_mov_b32 s59, 0x00020000
    v_lshrrev_b32 v12, 2, v2
    v_lshl_add_u32 v12, v3, 3, v12
    v_lshlrev_b32 v12, 6, v12
    v_and_b32 v13, 3, v2
    v_lshl_add_u32 v12, v13, 3, v12
    v_and_b32 v13, 1, v3
    v_lshl_add_u32 v12, v13, 5, v12
    v_add_u32 v12, {L_W}, v12
    v_xor_b32 v13, 32, v12
    v_lshlrev_b32 v8, 7, v2
    v_lshl_add_u32 v8, v3, 4, v8
    ''')
    if opts['line']:
        a(f'''
        v_and_b32 v9, 7, v2
        v_lshlrev_b32 v8, 7, v9
        v_lshl_add_u32 v8, v3, 4, v8
        v_lshrrev_b32 v9, 3, v2
        v_lshl_add_u32 v8, v9, 6, v8
        v_xor_b32 v15, {1024 + 64}, v8
        ''')
    a(f'''
    v_and_b32 v9, 7, v2
    v_xor_b32 v9, v9, v3
    v_lshlrev_b32 v9, 4, v9
    v_lshl_add_u32 v9, v2, 7, v9
    s_lshl_b32 s60, s3, 12
    s_add_u32 s31, s60, {L_U}
    v_add_u32 v9, s31, v9
    v_xor_b32 v10, 64, v9
    s_mov_b32 s54, {NLOG2E:#x}
    s_mov_b32 s55, {NLOG2E:#x}
    ''')
    srd(a, 40, 4, 5, N * 256)
    a(f's_mul_i32 s31, s29, {BN*128}')
    a(f's_add_u32 s31, s31, s30')
    srd_ws(a, 44, 's31', BN * 128)
    a(f'''
    s_cmp_ge_u32 s3, 8
    s_cbranch_scc1 kf_g3
    s_mov_b64 exec, 1
    s_waitcnt vmcnt(0)
    ds_add_u32 v11, v21 offset:{L_FLAG+16}
    s_mov_b64 exec, -1
    kf_g3:
    s_add_u32 s61, s3, 5
    s_sub_u32 s31, s3, 8
    s_cmp_ge_u32 s3, 8
    s_cselect_b32 s61, s31, s61
    s_sub_u32 s61, s61, {opts['xw'] - 1}
    s_cmp_lt_i32 s61, 1
    s_cbranch_scc1 kf_sx_ok
    ''')
    spin('kf_sx', 11, 16, L_FLAG + 20, 's61', 1)
    if opts['xdelay']:
        a(f's_sleep {opts["xdelay"]}')
    XS = ('', ' nt', ' sc1')[opts['xnt']]
    for tt in range(2):
        for hb in range(2):
            for hf in range(2):
                a(f'buffer_load_dwordx4 {vr(X + 16*tt + 4*(2*hf+hb), 4)}, v6, s[56:59], s{62+tt} offen offset:{hb*2048 + hf*128}{XS}')
    stamp(a, 0, 4)
    a(f'''
    s_mov_b64 exec, 1
    s_waitcnt vmcnt({opts['xrel']})
    ds_add_u32 v11, v21 offset:{L_FLAG+20}
    s_mov_b64 exec, -1
    ''')
    stamp(a, 1, 4)
    spin('kf_sw', 11, 16, L_FLAG + 16, 8, 1)
    stamp(a, 2, 4)
    WR = 16
    seq = [(p, ct, m, s) for p in range(2) for ct in range(2) for m in range(2) for s in range(4)]
    ldsq = []

    def acc(p, ct, m, tt):
        return 64 + p*32 + ct*16 + m*8 + tt*4

    def wread(i):
        p, ct, m, s = seq[i]
        for h in range(2):
            a(f'ds_read_b64_tr_b16 {vr(WR + 4*(i & 3) + 2*h, 2)}, v{12+ct} offset:{(2*p+m)*8192 + s*2048 + h*256}')
            ldsq.append(i)

    TS = ('', ' sc1', ' nt', ' sc0 sc1')[opts['tsc']]

    def pack(p, ct):
        ops = []
        for tt in range(2):
            lo, hi = acc(p, ct, 0, tt), acc(p, ct, 1, tt)
            for h in range(2):
                ops.append(f'v_pk_mul_f32 {vr(lo+2*h,2)}, {vr(lo+2*h,2)}, s[54:55]')
            if p == 0 and opts['line']:
                if ct == 0:
                    for r in range(4):
                        ops.append(f'v_cvt_pk_bf16_f32 v{lo+r}, v{lo+r}, v{hi+r}')
                        ops.append(f'v_mov_b32 v{hi+r}, v{lo+r}')
                else:
                    l0, h0 = acc(p, 0, 0, tt), acc(p, 0, 1, tt)
                    for r in range(4):
                        ops.append(f'v_cvt_pk_bf16_f32 v{lo+r}, v{lo+r}, v{hi+r}')
                    for r in range(4):
                        ops.append(f'v_mov_b32_dpp v{l0+r}, v{lo+r} row_ror:8 row_mask:0xf bank_mask:0xc')
                    for r in range(4):
                        ops.append(f'v_mov_b32_dpp v{h0+r}, v{lo+r} row_ror:8 row_mask:0xf bank_mask:0x3')
                    if not opts['x'] & 1:
                        ops.append(f'buffer_store_dwordx4 {vr(l0,4)}, v8, s[44:47], s60 offen offset:{tt*2048}{TS}')
                        ops.append(f'buffer_store_dwordx4 {vr(h0,4)}, v15, s[44:47], s60 offen offset:{tt*2048}{TS}')
                continue
            for r in range(4):
                ops.append(f'v_cvt_pk_bf16_f32 v{lo+r}, v{lo+r}, v{hi+r}')
            if p == 0:
                if not opts['x'] & 1:
                    ops.append(f'buffer_store_dwordx4 {vr(lo,4)}, v8, s[44:47], s60 offen offset:{tt*2048 + ct*64}{TS}')
            else:
                ops.append(f'ds_write_b128 v{9+ct}, {vr(lo,4)} offset:{tt*2048}')
        return ops
    for i in range(3):
        wread(i)
    for tt in range(2):
        a(f's_waitcnt vmcnt({4 - 4*tt})')
        for hf in range(2):
            A_, B_ = X + 16*tt + 8*hf, X + 16*tt + 8*hf + 4
            for r in range(4):
                a(f'v_mov_b32 v{124+r}, v{A_+r}')
            for r in range(4):
                a(f'v_mov_b32_dpp v{A_+r}, v{B_+r} row_ror:8 row_mask:0xf bank_mask:0xc')
            for r in range(4):
                a(f'v_mov_b32_dpp v{B_+r}, v{124+r} row_ror:8 row_mask:0xf bank_mask:0x3')
    pend = []
    for i, (p, ct, m, s) in enumerate(seq):
        if i + 3 < len(seq):
            wread(i + 3)
        last = max(j for j, t in enumerate(ldsq) if t == i)
        w = f'lgkmcnt({min(15, len(ldsq) - 1 - last)})'
        a(f's_waitcnt {w}')
        for tt in range(2):
            c = '0' if s == 0 else vr(acc(p, ct, m, tt), 4)
            a(f'v_mfma_f32_16x16x32_bf16 {vr(acc(p,ct,m,tt),4)}, {vr(WR + 4*(i & 3), 4)}, {vr(X + 16*tt + 4*s, 4)}, {c}')
            if i % 8 >= 1:
                for _ in range(3):
                    if pend:
                        o = pend.pop(0)
                        a(o)
                        if o.startswith('ds_'):
                            ldsq.append(-1)
        if i == 3:
            stamp(a, 3, 4)
        if i in (7, 15, 23):
            stamp(a, 7 + i // 8, 4, 2)
        if i % 8 == 7:
            assert not pend
            pend = pack(p, ct)
    for o in pend:
        a(o)
    a(f'''
    s_cmp_lg_u32 s29, {NB-1}
    s_cbranch_scc1 kf_g1
    s_cmp_lg_u32 s3, 12
    s_cbranch_scc1 kf_g1
    v_mov_b32 v16, 0x7f7f
    v_mov_b32 v17, 0x7f7f
    v_mov_b32 v18, 0x7f7f
    v_mov_b32 v19, 0x7f7f
    v_lshlrev_b32 v20, 4, v1
    s_add_u32 s31, s30, {DUMMY*128}
    s_mov_b64 exec, 0xff
    buffer_store_dwordx4 v[16:19], v20, s[32:35], s31 offen sc1
    s_mov_b64 exec, -1
    kf_g1:
    ''')
    stamp(a, 4, 4)
    spin('kf_zg', 11, 16, L_FLAG, 3, 2)
    a('s_branch kf_B')

    a.reset()
    a.label('kf_aux')
    DS_, SR_, EV_, BA, RK_ = 32, 42, 52, 72, 82
    a(f'''
    s_setprio 3
    v_add_u32 v4, {-832*8}, v4
    v_add_u32 v8, {-832*16}, v5
    s_mul_i32 s76, s2, {CH*4}
    s_mul_i32 s82, s2, {CH*8}
    s_movk_i32 s31, {CH//2 + 832 - 576}
    s_cmp_eq_u32 s2, {NCH-1}
    s_cselect_b32 s31, {(E - (NCH-1)*CH)//2 + 832 - 576}, s31
    v_cmp_gt_u32 s[88:89], s31, v0
    s_sub_u32 s31, s31, 192
    v_cmp_gt_u32 s[90:91], s31, v0
    ''')
    for r in range(1, 5):
        a(f's_add_u32 s{76+r}, s76, {r*1536}')
        a(f's_add_u32 s{82+r}, s82, {r*3072}')
    a(f'''
    s_waitcnt lgkmcnt(0)
    ''')
    wsoff(a)
    if not opts['barlate']:
        a('s_barrier')
    stamp(a, 15, 30)
    srd(a, 56, 10, 11, E * 4)
    srd(a, 64, 8, 9, E * 4)
    srd(a, 68, 6, 7, E * 8)

    def rmask(r):
        if r >= 3:
            a(f's_mov_b64 exec, s[{88+2*(r-3)}:{89+2*(r-3)}]')
    for (base, d, so, w, va) in ((DS_, 56, 76, 2, 4), (SR_, 64, 76, 2, 4), (EV_, 68, 82, 4, 8)):
        for r in range(5):
            rmask(r)
            a(f'buffer_load_dwordx{w} {vr(base+w*r,w)}, v{va}, s[{d}:{d+3}], s{so + r} offen{" nt" if opts["ent"] else ""}')
        a('s_mov_b64 exec, -1')
    if opts['barlate']:
        a('s_barrier')
    stamp(a, 0, 30)
    lds_init()
    srd(a, 72, 24, 25, 256)
    srd(a, 32, 26, 27, WS_USED)
    srd(a, 40, 4, 5, N * 256)
    a(f's_mul_i32 s31, s2, {CHB}')
    a(f's_add_u32 s31, s31, {REC}')
    srd_ws(a, 44, 's31', CH * 12)
    a(f'''
    s_mov_b32 s52, 42800
    s_movk_i32 s54, {-BN}
    s_movk_i32 s55, {HIST}
    v_mov_b32 v17, 1
    v_add_u32 v9, {L_STG}, v8
    ''')
    NW = 0
    for r in range(5):
        a(f's_waitcnt vmcnt({NW + 14 - r})')
        rmask(r)
        for q in range(2):
            k = 2*r + q
            a(f'v_mul_u32_u24 v{BA+k}, s52, v{DS_+k}')
            a(f'v_lshrrev_b32 v{BA+k}, 24, v{BA+k}')
            a(f'v_mad_i32_i24 v{DS_+k}, v{BA+k}, s54, v{DS_+k}')
            a(f'v_lshl_add_u32 v{BA+k}, v{BA+k}, 2, s55')
            a(f'ds_add_rtn_u32 v{RK_+k}, v{BA+k}, v17')
    a(f'''
    s_mov_b64 exec, 1
    ds_add_u32 v11, v17 offset:{L_FLAG+8}
    s_mov_b64 exec, -1
    ''')
    stamp(a, 1, 30)
    a(f's_waitcnt vmcnt({NW + 5})')
    stamp(a, 7, 30, 2)
    for k in range(10):
        a(f'v_lshl_or_b32 v{SR_+k}, v{DS_+k}, 18, v{SR_+k}')
    spin('kf_s1', 11, 16, L_FLAG + 8, 3)
    stamp(a, 8, 30, 2)
    a(f'''
    ds_read_b32 v24, v7 offset:{HIST}
    s_waitcnt lgkmcnt(0)
    v_mov_b32 v25, v24
    ''')
    scan_incl(a, 25)
    a('v_sub_u32 v25, v25, v24')
    for k in range(10):
        a(f'ds_bpermute_b32 v{BA+k}, v{BA+k}, v25')
    a(f'''
    v_lshl_or_b32 v25, v24, 16, v25
    v_or_b32 v25, 0x80000000, v25
    s_mov_b32 s31, {L_STG}
    s_mov_b32 s52, {L_STG + CH*4}
    ''')
    stamp(a, 9, 30, 2)
    a(f's_waitcnt vmcnt({NW})')
    stamp(a, 10, 30, 2)
    for r in range(5):
        rmask(r)
        for q in range(2):
            k = 2*r + q
            a(f's_waitcnt lgkmcnt({min(15, 9 - k + 2*k)})')
            a(f'v_add_u32 v{BA+k}, v{BA+k}, v{RK_+k}')
            a(f'v_lshl_add_u32 v{RK_+k}, v{BA+k}, 2, s31')
            a(f'v_lshl_add_u32 v{BA+k}, v{BA+k}, 3, s52')
            a(f'ds_write_b32 v{RK_+k}, v{SR_+k}')
            a(f'ds_write_b64 v{BA+k}, {vr(EV_+2*k,2)}')
    a(f'''
    s_mov_b64 exec, 1
    ds_add_u32 v11, v17 offset:{L_FLAG+12}
    s_mov_b64 exec, -1
    ''')
    stamp(a, 11, 30, 2)
    spin('kf_s2', 11, 16, L_FLAG + 12, 3)
    stamp(a, 2, 30)
    for r in range(7):
        a(f'ds_read_b128 {vr(32+4*r,4)}, v9 offset:{r*3072}')
    for r in range(7):
        a(f's_movk_i32 s52, {r*3072}')
        a(f's_waitcnt lgkmcnt({6-r})')
        a(f'buffer_store_dwordx4 {vr(32+4*r,4)}, v8, s[44:47], s52 offen sc1')
    a(f'''
    v_mov_b32 v15, 1
    s_cmp_lg_u32 s3, 15
    s_cbranch_scc1 kf_a3
    {ZLOAD}
    kf_a3:
    s_waitcnt vmcnt(0)
    ''')
    stamp(a, 3, 30)
    zcheck(a, 'kf_za')
    a(f'''
    s_mov_b64 exec, 1
    ds_add_rtn_u32 v18, v11, v17 offset:{L_FLAG}
    s_mov_b64 exec, -1
    s_lshl_b32 s52, s2, 8
    s_add_u32 s52, s52, {OFF}
    s_waitcnt lgkmcnt(0)
    v_readfirstlane_b32 s31, v18
    s_cmp_lg_u32 s31, 2
    s_cbranch_scc1 kf_a4
    buffer_store_dword v25, v7, s[32:35], s52 offen sc1
    ''')
    stamp(a, 4, 30)
    a('s_branch kf_B')
    a('kf_a4:')
    spin('kf_zh', 11, 16, L_FLAG, 3, 2)

    K, EV, RK, BS = 16, 30, 58, 104
    UB, XB, XA, WC, SEL = 68, 84, 92, 96, 100
    G, IDX, EB, T = 16, 48, 52, 60
    UA = 8
    DEN, AGG, C, VS, VE, TMP = 104, 108, 112, 116, 117, 118
    assert 4 * U <= 32 and U % 2 == 0
    a.reset()
    a.label('kf_B')
    a('s_setprio 0')
    OLOAD = 'buffer_load_dword v7, v3, s[32:35], s31 offen sc1'
    a(f'''
    v_lshrrev_b32 v2, 2, v0
    v_lshlrev_b32 v3, 8, v2
    s_lshl_b32 s31, s29, 2
    s_add_u32 s31, s31, {OFF}
    {OLOAD}
    v_and_b32 v4, 7, v0
    v_lshrrev_b32 v5, 4, v1
    v_lshl_add_u32 v6, v4, 2, v5
    v_lshlrev_b32 v6, 1, v6
    ''')
    srd(a, 48, 16, 17, 1024)
    a('s_waitcnt lgkmcnt(0)')
    for i in range(4):
        a(f'buffer_load_ushort v{WC+i}, v6, s[48:51], s94 offen offset:{i*256}')
    srd_ws(a, 36, 's30', ROWS, 128)
    srd(a, 44, 22, 23, N * 256)
    a(f'''
    v_lshlrev_b32 v104, 2, v0
    v_mul_u32_u24 v107, {CHB}, v2
    v_add_u32 v107, {REC}, v107
    v_and_b32 v108, 3, v0
    v_lshlrev_b32 v108, 1, v108
    v_mov_b32 v16, {L_FLAG+4}
    v_mov_b32 v17, 1
    s_cmp_gt_u32 s3, 12
    s_waitcnt vmcnt(0)
    s_cbranch_scc1 kf_B1
    s_mov_b64 exec, 1
    ds_add_rtn_u32 v18, v16, v17
    s_lshl_b32 s52, s29, 2
    s_lshl_b32 s53, s28, 8
    s_add_u32 s52, s52, s53
    s_add_u32 s52, s52, {TF}
    s_waitcnt lgkmcnt(0)
    v_readfirstlane_b32 s53, v18
    s_cmp_lg_u32 s53, 12
    s_cbranch_scc1 kf_B1
    buffer_store_dword v17, off, s[32:35], s52 sc1
    kf_B1:
    s_mov_b64 exec, -1
    ''')
    stamp(a, 5)
    poll(a, 'kf_po', 7, OLOAD, 'v_cmp_gt_i32 vcc, 0, v7')
    stamp(a, 12, 126, 2)
    a(f'''
    v_cndmask_b32 v7, 0, v7, vcc
    v_bfe_u32 v109, v7, 16, 15
    v_and_b32 v7, 0xffff, v7
    v_add_u32 v7, v7, v108
    v_lshl_add_u32 v110, v7, 2, v107
    v_lshl_add_u32 v111, v7, 3, v107
    v_sub_u32 v108, v109, v108
    s_movk_i32 s95, {CH*4}
    ''')

    def M(r, q=0):
        b = 52 + 4*r + 2*q
        return f's[{b}:{b+1}]'
    for r in range(R):
        a(f'v_cmp_lt_i32 {M(r)}, {8*r}, v108')
    for r in range(R):
        a(f's_mov_b64 exec, {M(r)}')
        a(f'buffer_load_dwordx2 {vr(K+2*r,2)}, v110, s[32:35], 0 offen offset:{r*32} sc1')
    for r in range(R):
        a(f's_mov_b64 exec, {M(r)}')
        a(f'buffer_load_dwordx4 {vr(EV+4*r,4)}, v111, s[32:35], s95 offen offset:{r*64} sc1')
    a('s_mov_b64 exec, -1')
    stamp(a, 6)
    for r in range(R):
        a(f'v_cmp_lt_i32 {M(r,1)}, {8*r+1}, v108')
    a(f'''
    s_mov_b32 s95, {NLOG2E:#x}
    v_lshlrev_b32 v{WC}, 16, v{WC}
    v_lshlrev_b32 v{WC+1}, 16, v{WC+1}
    v_lshlrev_b32 v{WC+2}, 16, v{WC+2}
    v_lshlrev_b32 v{WC+3}, 16, v{WC+3}
    v_mul_f32 v{WC}, s95, v{WC}
    v_mul_f32 v{WC+1}, s95, v{WC+1}
    v_mul_f32 v{WC+2}, s95, v{WC+2}
    v_mul_f32 v{WC+3}, s95, v{WC+3}
    v_cvt_pk_bf16_f32 v112, v{WC}, v{WC+1}
    v_cvt_pk_bf16_f32 v113, v{WC+2}, v{WC+3}
    v_and_b32 v114, 8, v1
    v_cmp_eq_u32 vcc, 0, v114
    v_cndmask_b32 v{WC}, 0, v112, vcc
    v_cndmask_b32 v{WC+1}, 0, v113, vcc
    v_cndmask_b32 v{WC+2}, v112, 0, vcc
    v_cndmask_b32 v{WC+3}, v113, 0, vcc
    v_and_b32 v114, 15, v1
    v_lshlrev_b32 v115, 2, v5
    v_sub_u32 v114, v114, v115
    v_mov_b32 v115, 0x3f80
    ''')
    for q in range(4):
        a(f'v_cmp_eq_u32 vcc, {q}, v114')
        a(f'v_cndmask_b32 v{SEL+q}, 0, v115, vcc')
    a(f'''
    v_mov_b32 v8, 1
    v_cmp_gt_u32 vcc, 49, v1
    v_cndmask_b32 v9, 0, 2, vcc
    v_mul_u32_u24 v10, 43, v1
    v_lshrrev_b32 v10, 7, v10
    v_min_u32 v10, 15, v10
    v_mul_u32_u24 v10, {GAP}, v10
    v_lshlrev_b32 v11, 2, v1
    v_cmp_gt_u32 vcc, {BN}, v0
    s_mov_b64 s[92:93], vcc
    v_cmp_lt_u32 vcc, {8*R}, v109
    s_mov_b64 exec, vcc
    v_mov_b32 v12, {L_BL}
    v_mov_b32 v13, 0x4000
    ds_max_u32 v12, v13
    ''')
    for r in range(R):
        a(f's_mov_b64 exec, {M(r)}')
        if r >= 3:
            a('s_cbranch_execz kf_p1e')
        a(f's_waitcnt vmcnt({R - 1 - r + R})')
        for q in range(2):
            if q:
                a(f's_mov_b64 exec, {M(r,q)}')
            a(f'v_lshrrev_b32 v12, 16, v{K+2*r+q}')
            a(f'ds_add_rtn_u32 v{RK+2*r+q}, v12, v8')
    a(f'''
    kf_p1e:
    s_mov_b64 exec, -1
    s_waitcnt lgkmcnt(0)
    ''')
    stamp(a, 7)
    a('s_barrier')
    stamp(a, 8)
    a(f'''
    s_cmp_gt_u32 s3, 6
    s_cbranch_scc1 kf_z2
    s_mov_b64 exec, s[92:93]
    ds_read_b32 v12, v104
    s_waitcnt lgkmcnt(0)
    v_min_u32 v13, 63, v12
    v_sub_u32 v13, 63, v13
    v_lshlrev_b32 v13, 2, v13
    ds_add_rtn_u32 v14, v13, v8 offset:{L_DH}
    s_mov_b64 exec, -1
    s_waitcnt lgkmcnt(0)
    s_branch kf_b2
    kf_z2:
    s_cmp_eq_u32 s3, 7
    s_cbranch_scc1 kf_b2
    v_mov_b32 v12, 0
    v_mov_b32 v13, 0
    v_mov_b32 v14, 0
    v_mov_b32 v15, 0
    v_lshlrev_b32 v105, 4, v0
    v_add_u32 v105, {L_E - 8192}, v105
    ''')
    for i in range(8):
        a(f'ds_write_b128 v105, v[12:15] offset:{i*8192}')
    a(f'''
    kf_b2:
    s_barrier
    s_cmp_gt_u32 s3, 6
    s_cbranch_scc1 kf_b3
    ds_read_b32 v15, v11 offset:{L_DH}
    s_waitcnt lgkmcnt(0)
    v_mov_b32 v112, v15
    ''')
    scan_incl(a, 112)
    a(f'''
    v_sub_u32 v112, v112, v15
    ds_bpermute_b32 v15, v13, v112
    s_waitcnt lgkmcnt(0)
    s_mov_b64 exec, s[92:93]
    v_add_u32 v14, v14, v15
    v_lshrrev_b32 v15, 3, v14
    v_and_b32 v14, 7, v14
    v_lshrrev_b32 v112, 4, v15
    v_and_b32 v113, 15, v15
    v_xor_b32 v114, 15, v113
    v_cmp_lt_u32 vcc, 15, v15
    v_cndmask_b32 v113, v113, v114, vcc
    v_mad_u32_u24 v15, v113, 3, v112
    v_lshlrev_b32 v13, 2, v15
    ds_max_u32 v13, v12 offset:{L_BL}
    v_lshlrev_b32 v14, 2, v14
    v_lshl_add_u32 v112, v15, 5, v14
    ds_write_b32 v112, v0 offset:{L_NID}
    s_mov_b64 exec, -1
    s_waitcnt lgkmcnt(0)
    kf_b3:
    s_barrier
    ''')
    stamp(a, 9)
    TLOAD = 'buffer_load_dword v15, v11, s[32:35], s81 offen sc1'
    a(f'''
    s_mul_i32 s91, s3, 3
    s_lshl_b32 s95, s91, 5
    v_lshrrev_b32 v116, 3, v1
    v_lshlrev_b32 v116, 2, v116
    v_add_u32 v117, s95, v116
    ds_read_b32 v112, v11 offset:{L_BL}
    ''')
    for k in range(4):
        a(f'ds_read_b32 v{XA+k}, v117 offset:{L_NID + 32*k}')
    a(f'''
    s_mul_i32 s31, s29, {BN*256}
    s_add_u32 s31, s31, s94
    s_lshl_b32 s81, s28, 8
    s_add_u32 s81, s81, {TF}
    v_lshlrev_b32 v118, 4, v4
    v_lshlrev_b32 v119, 3, v4
    s_waitcnt lgkmcnt(4)
    v_max_u32 v112, v112, v9
    v_mov_b32 v113, v112
    ''')
    scan_incl(a, 113)
    a(f'''
    v_readlane_b32 s90, v113, 63
    v_sub_u32 v113, v113, v112
    v_add_u32 v113, v113, v10
    s_cmp_gt_u32 s90, {CAP - 16*GAP if not opts['force_slow'] else 0}
    s_cbranch_scc1 kf_slow
    ds_bpermute_b32 v114, v13, v113
    s_mov_b32 s95, {L_U}
    s_waitcnt lgkmcnt(1)
    ''')
    for k in range(4):
        a(f'v_xor_b32 v{UA+k}, v{XA+k}, v4')
        a(f'v_and_b32 v{UA+k}, 7, v{UA+k}')
        a(f'v_lshl_add_u32 v{UA+k}, v{UA+k}, 4, s95')
        a(f'v_lshl_add_u32 v{UA+k}, v{XA+k}, 7, v{UA+k}')
        a(f'v_lshl_add_u32 v{XA+k}, v{XA+k}, 8, v119')
        a(f'buffer_load_dwordx2 {vr(XB+2*k,2)}, v{XA+k}, s[40:43], s31 offen')
    a(f'''
    v_lshlrev_b32 v120, 2, v1
    buffer_load_dword v15, v120, s[32:35], s81 offen sc1
    v_readlane_b32 s87, v112, s91
    v_readlane_b32 s86, v113, s91
    s_add_u32 s91, s91, 1
    v_readlane_b32 s88, v112, s91
    s_add_u32 s91, s91, 1
    v_readlane_b32 s89, v112, s91
    s_add_u32 s91, s91, 1
    v_readlane_b32 s90, v112, s91
    s_mov_b64 exec, s[92:93]
    s_waitcnt lgkmcnt(0)
    v_lshl_add_u32 v114, v114, 5, v14
    ds_write_b32 v104, v114
    s_mov_b64 exec, -1
    s_waitcnt lgkmcnt(0)
    s_barrier
    ''')
    TLOAD = 'buffer_load_dword v15, v120, s[32:35], s81 offen sc1'
    stamp(a, 10)
    for r in range(R):
        a(f's_mov_b64 exec, {M(r)}')
        if r >= 3:
            a('s_cbranch_execz kf_p5a')
        for q in range(2):
            k = 2*r + q
            if q:
                a(f's_mov_b64 exec, {M(r,q)}')
            a(f'v_lshrrev_b32 v12, 16, v{K+k}')
            a(f'ds_read_b32 v{BS+k}, v12')
    a('kf_p5a:')
    a(f's_waitcnt vmcnt(5) lgkmcnt(0)')
    for r in range(R):
        a(f's_mov_b64 exec, {M(r)}')
        if r >= 3:
            a('s_cbranch_execz kf_p5b')
        for q in range(2):
            k = 2*r + q
            if q:
                a(f's_mov_b64 exec, {M(r,q)}')
            a(f'v_lshl_add_u32 v12, v{RK+k}, 5, v{BS+k}')
            a(f'v_lshlrev_b32 v13, 1, v12')
            a(f'ds_write_b16 v12, v{K+k} offset:{L_S}')
            a(f'ds_write_b64 v13, {vr(EV+4*r+2*q,2)} offset:{L_E}')
    a(f'''
    kf_p5b:
    s_mov_b64 exec, -1
    ''')
    for k in range(4):
        a(f'ds_read_b128 {vr(UB+4*k,4)}, v{UA+k}')
    a(f'''
    s_mov_b32 s76, 0x22221111
    s_mov_b32 s77, 0x88884444
    s_mov_b32 s78, 1.0
    s_mov_b32 s79, 1.0
    s_lshl_b32 s95, s86, 5
    s_add_u32 s95, s95, {L_S}
    v_lshrrev_b32 v{VS}, 3, v1
    v_lshl_add_u32 v{VS}, v{VS}, 2, s95
    s_lshl_b32 s95, s86, 6
    s_add_u32 s95, s95, {L_E}
    v_and_b32 v{VE}, 12, v1
    v_lshlrev_b32 v{VE}, 2, v{VE}
    v_add_u32 v{VE}, s95, v{VE}
    s_getpc_b64 s[84:85]
    kf_pc:
    s_add_u32 s84, s84, kf_evA0-kf_pc
    s_addc_u32 s85, s85, 0
    s_sub_u32 s86, s87, 2
    s_waitcnt vmcnt(0)
    ''')
    stamp(a, 11)
    poll(a, 'kf_pt', 15, TLOAD, 'v_cmp_ne_u32 vcc, 0, v15')
    a(f'''
    s_mov_b32 s80, {EPS:#x}
    s_mov_b32 s81, {EPS:#x}
    s_waitcnt lgkmcnt(0)
    s_barrier
    ''')
    stamp(a, 12)
    if opts['prio']:
        a('s_setprio 3')
    for i in range(U - 1):
        a(f'ds_read_b32 v{DEN+i}, v{VS} offset:{i*32}')
    for i in range(8):
        a(f'v_mov_b32 v{EB+i}, 0')
    a(f'v_mov_b32 v{IDX+1}, v118')
    a(f'v_mov_b32 v{IDX+3}, v118')
    a(f'''
    s_mov_b64 exec, s[76:77]
    ds_read_b128 {vr(EB,4)}, v{VE}
    ds_read_b128 {vr(EB+4,4)}, v{VE} offset:64
    s_mov_b64 exec, -1
    ''')
    for i in range(U - 1):
        a(f's_waitcnt lgkmcnt({U-2-i+2})')
        a(f'v_mov_b32 v{IDX+2}, v{DEN+i}')
        a(f'buffer_load_dwordx4 {vr(G+4*i,4)}, {vr(IDX+2,2)}, s[36:39], 0 idxen offen{GS}')
    a(f'ds_read_b32 v{IDX}, v{VS} offset:{(U-1)*32}')
    for r in range(4):
        a(f'v_lshlrev_b32 v{C+r}, 16, v{UB+r}')
        a(f'v_mov_b32 v{DEN+r}, s80')
        a(f'v_mov_b32 v{AGG+r}, 0')
    a(f'''
    s_waitcnt vmcnt({U-2}) lgkmcnt(1)
    v_mfma_f32_16x16x32_bf16 {vr(T,4)}, {vr(EB,4)}, {vr(WC,4)}, {vr(C,4)}
    v_mfma_f32_16x16x32_bf16 {vr(T,4)}, {vr(SEL,4)}, {vr(G,4)}, {vr(T,4)}
    s_mov_b64 exec, s[76:77]
    ds_read_b128 {vr(EB,4)}, v{VE} offset:128
    s_mov_b64 exec, -1
    s_nop 4
    ''')
    a.label('kf_loop')
    for k in range(U):
        Tc, Tn = T + 4*(k & 1), T + 4*((k+1) & 1)
        En = EB + 4*((k+1) & 1)
        a(f's_waitcnt vmcnt({U-3}) lgkmcnt(1)')
        a(f'v_mfma_f32_16x16x32_bf16 {vr(Tn,4)}, {vr(En,4)}, {vr(WC,4)}, {vr(C,4)}')
        a(f'v_exp_f32 v{Tc}, v{Tc}')
        a(f'v_exp_f32 v{Tc+1}, v{Tc+1}')
        a(f'v_mfma_f32_16x16x32_bf16 {vr(Tn,4)}, {vr(SEL,4)}, {vr(G+4*((k+1)%U),4)}, {vr(Tn,4)}')
        a(f'v_exp_f32 v{Tc+2}, v{Tc+2}')
        a(f'v_exp_f32 v{Tc+3}, v{Tc+3}')
        a(f'buffer_load_dwordx4 {vr(G+4*((k+U-1)%U),4)}, {vr(IDX+2*(k&1),2)}, s[36:39], 0 idxen offen{GS}')
        a(f'v_pk_add_f32 {vr(Tc,2)}, {vr(Tc,2)}, s[78:79]')
        a(f'ds_read_b32 v{IDX+2*((k+1)&1)}, v{VS} offset:{(k+U)*32}')
        a(f'v_pk_add_f32 {vr(Tc+2,2)}, {vr(Tc+2,2)}, s[78:79]')
        a(f's_mov_b64 exec, s[76:77]')
        a(f'ds_read_b128 {vr(En,4)}, v{VE} offset:{(k+3)*64}')
        a(f's_mov_b64 exec, -1')
        for r in range(4):
            a(f'v_rcp_f32 v{Tc+r}, v{Tc+r}')
        if k == U - 1:
            a(f'v_add_u32 v{VS}, {U*32}, v{VS}')
            a(f'v_add_u32 v{VE}, {U*64}, v{VE}')
        a(f's_sub_u32 s86, s86, 1')
        for h in range(2):
            a(f'v_pk_add_f32 {vr(DEN+2*h,2)}, {vr(DEN+2*h,2)}, {vr(Tc+2*h,2)}')
            a(f'v_pk_fma_f32 {vr(AGG+2*h,2)}, {vr(Tc+2*h,2)}, {vr(G+4*k+2*h,2)}, {vr(AGG+2*h,2)}')
        a(f's_cbranch_scc1 kf_tr{k}')
        a.label(f'kf_r{k}')
    a('s_branch kf_loop')
    for k in range(U):
        a.label(f'kf_tr{k}')
        a('s_swappc_b64 s[82:83], s[84:85]')
        a(f's_branch kf_r{k}')

    def epilogue(den, agg, ub, xb, xa):
        for r in range(4):
            a(f'v_rcp_f32 v{den+r}, v{den+r}')
        for r in range(4):
            a(f'v_and_b32 v{TMP+r}, 0xffff0000, v{ub+r}')
        for h in range(2):
            a(f'v_pk_fma_f32 {vr(agg+2*h,2)}, {vr(agg+2*h,2)}, {vr(den+2*h,2)}, {vr(TMP+2*h,2)}')
        for h in range(2):
            a(f'v_lshlrev_b32 v{TMP+2*h}, 16, v{xb+h}')
            a(f'v_and_b32 v{TMP+2*h+1}, 0xffff0000, v{xb+h}')
        for r in range(4):
            a(f'v_max_f32 v{agg+r}, 0, v{agg+r}')
        for h in range(2):
            a(f'v_pk_add_f32 {vr(agg+2*h,2)}, {vr(agg+2*h,2)}, {vr(TMP+2*h,2)}')
        for h in range(2):
            a(f'v_cvt_pk_bf16_f32 v{TMP+4+h}, v{agg+2*h}, v{agg+2*h+1}')
        a(f'buffer_store_dwordx2 {vr(TMP+4,2)}, v{xa}, s[44:47], s31 offen')

    for b in range(4):
        if b < 3:
            a.reset()
            a.label(f'kf_evA{b}')
            for r in range(4):
                a(f'v_lshlrev_b32 v{C+r}, 16, v{UB+4*(b+1)+r}')
            a(f's_mov_b32 s86, 0')
            a(f's_add_u32 s84, s84, kf_evB{b}-kf_evA{b}')
            a(f's_addc_u32 s85, s85, 0')
            a('s_setpc_b64 s[82:83]')
        a.reset()
        a.label(f'kf_evB{b}')
        epilogue(DEN, AGG, UB+4*b, XB+2*b, XA+b)
        if b == 3:
            stamp(a, 14)
            a.label('kf_done')
            stamp_dump(a)
            a.label('kf_exit')
            a('s_endpgm')
            break
        if b == 2:
            stamp(a, 13)
            a('s_cmp_lg_u32 s3, 15')
            a('s_cbranch_scc1 kf_done')
        if opts['prio']:
            a(f's_setprio {2-b}')
        for r in range(4):
            a(f'v_mov_b32 v{DEN+r}, s80')
            a(f'v_mov_b32 v{AGG+r}, 0')
        nxt = f'kf_evA{b+1}' if b < 2 else 'kf_evB3'
        a(f's_sub_u32 s86, s{88+b}, {2 if b < 2 else 1}')
        a(f's_add_u32 s84, s84, {nxt}-kf_evB{b}')
        a(f's_addc_u32 s85, s85, 0')
        a('s_setpc_b64 s[82:83]')

    a.reset()
    W = 16
    a.label('kf_slow')
    a(f'''
    v_lshlrev_b32 v120, 2, v1
    {TLOAD}
    s_waitcnt vmcnt(0) lgkmcnt(0)
    ''')
    poll(a, 'kf_ps', 15, TLOAD, 'v_cmp_ne_u32 vcc, 0, v15')
    a(f'''
    s_mov_b32 s80, {EPS:#x}
    s_mov_b32 s81, {EPS:#x}
    s_barrier
    v_mov_b32 v8, 0
    v_mov_b32 v9, 0
    v_mov_b32 v10, 0
    v_mov_b32 v11, 0
    v_lshlrev_b32 v105, 4, v0
    v_add_u32 v106, {L_ACC + 49152}, v105
    ''')
    for i in range(3):
        a(f'ds_write_b128 v105, v[8:11] offset:{L_ACC + i*16384}')
    for i in range(3):
        a(f'ds_write_b128 v106, v[8:11] offset:{i*16384}')
    a(f'''
    v_cmp_gt_u32 vcc, 0x80, v0
    s_mov_b64 exec, vcc
    ds_write_b128 v106, v[8:11] offset:{3*16384}
    s_mov_b64 exec, -1
    ''')
    for i in range(4):
        a(f'buffer_load_dwordx2 {vr(32+2*i,2)}, v119, s[48:51], s94 offen offset:{i*256}')
    a(f's_mov_b32 s60, {NLOG2E:#x}')
    a(f's_waitcnt vmcnt(0)')
    for i in range(4):
        for h in range(2):
            a(f'v_lshlrev_b32 v{W+4*i+2*h}, 16, v{32+2*i+h}')
            a(f'v_and_b32 v{W+4*i+2*h+1}, 0xffff0000, v{32+2*i+h}')
    for i in range(16):
        a(f'v_mul_f32 v{W+i}, s60, v{W+i}')
    a(f'''
    v_lshrrev_b32 v2, 3, v1
    v_mov_b32 v41, v118
    s_lshl_b32 s61, s29, 2
    s_add_u32 s61, s61, {OFF}
    s_mov_b32 s62, s3
    s_mov_b32 s95, {L_U}
    s_waitcnt lgkmcnt(0)
    s_barrier
    kf_s_chunk:
    s_lshl_b32 s63, s62, 8
    v_mov_b32 v32, s63
    buffer_load_dword v32, v32, s[32:35], s61 offen sc1
    s_mul_i32 s64, s62, {CHB}
    s_add_u32 s64, s64, {REC}
    s_add_u32 s65, s64, {CH*4}
    s_waitcnt vmcnt(0)
    v_readfirstlane_b32 s66, v32
    s_bfe_u32 s67, s66, 0xf0010
    s_and_b32 s66, s66, 0xffff
    s_add_u32 s67, s67, s66
    kf_s_step:
    s_cmp_ge_u32 s66, s67
    s_cbranch_scc1 kf_s_next
    v_add_u32 v32, s66, v2
    v_cmp_gt_u32 vcc, s67, v32
    s_mov_b64 exec, vcc
    v_lshlrev_b32 v33, 2, v32
    v_lshlrev_b32 v34, 3, v32
    buffer_load_dword v35, v33, s[32:35], s64 offen sc1
    buffer_load_dwordx2 v[36:37], v34, s[32:35], s65 offen sc1
    s_waitcnt vmcnt(0)
    v_and_b32 v40, 0xffff, v35
    v_lshrrev_b32 v35, 16, v35
    v_and_b32 v33, 28, v35
    v_lshlrev_b32 v33, 2, v33
    v_xor_b32 v33, v33, v118
    v_lshl_add_u32 v33, v35, 5, v33
    v_add_u32 v33, s95, v33
    buffer_load_dwordx4 v[44:47], v[40:41], s[36:39], 0 idxen offen sc1
    ds_read_b128 v[48:51], v33
    v_lshlrev_b32 v52, 16, v36
    v_and_b32 v53, 0xffff0000, v36
    v_lshlrev_b32 v54, 16, v37
    v_and_b32 v55, 0xffff0000, v37
    v_lshl_add_u32 v34, v35, 6, v118
    s_waitcnt vmcnt(0) lgkmcnt(0)
    ''')
    for r in range(4):
        a(f'v_lshlrev_b32 v{56+r}, 16, v{44+r}')
        a(f'v_lshlrev_b32 v60, 16, v{48+r}')
        a(f'v_add_f32 v{56+r}, v{56+r}, v60')
        for i in range(4):
            a(f'v_fmac_f32 v{56+r}, v{52+i}, v{W+4*i+r}')
        a(f'v_exp_f32 v{56+r}, v{56+r}')
        a(f'v_add_f32 v{56+r}, 1.0, v{56+r}')
        a(f'v_rcp_f32 v{56+r}, v{56+r}')
        a(f'v_mul_f32 v{44+r}, v{56+r}, v{44+r}')
        a(f'ds_add_f32 v34, v{56+r} offset:{L_ACC + 4*r}')
        a(f'ds_add_f32 v34, v{44+r} offset:{L_ACC + 128 + 4*r}')
    a(f'''
    s_mov_b64 exec, -1
    s_add_u32 s66, s66, 8
    s_branch kf_s_step
    kf_s_next:
    s_add_u32 s62, s62, 16
    s_cmp_lt_u32 s62, {NCH}
    s_cbranch_scc1 kf_s_chunk
    s_waitcnt lgkmcnt(0)
    s_barrier
    s_mov_b32 s62, 0
    v_lshrrev_b32 v2, 3, v0
    kf_s_fin:
    v_add_u32 v32, s62, v2
    v_cmp_gt_u32 vcc, {BN}, v32
    s_mov_b64 exec, vcc
    s_cbranch_execz kf_exit
    v_xor_b32 v33, v32, v4
    v_and_b32 v33, 7, v33
    v_lshl_add_u32 v33, v33, 4, s95
    v_lshl_add_u32 v33, v32, 7, v33
    v_lshl_add_u32 v34, v32, 8, v118
    v_lshl_add_u32 v35, v32, 8, v119
    ds_read_b128 v[44:47], v33
    buffer_load_dwordx2 v[48:49], v35, s[40:43], s31 offen
    ds_read_b128 v[52:55], v34 offset:{L_ACC}
    ds_read_b128 v[56:59], v34 offset:{L_ACC + 128}
    v_mov_b32 v60, v118
    v_mov_b32 v61, v119
    s_waitcnt vmcnt(0) lgkmcnt(0)
    v_pk_add_f32 v[52:53], v[52:53], s[80:81]
    v_pk_add_f32 v[54:55], v[54:55], s[80:81]
    ''')
    epilogue(52, 56, 44, 48, 35)
    a(f'''
    v_mov_b32 v118, v60
    v_mov_b32 v119, v61
    s_add_u32 s62, s62, 128
    s_branch kf_s_fin
    ''')


def descriptor(name, vgpr, sgpr=102):
    acc = (vgpr + 3) // 4 * 4
    return f'''.p2align 6
.amdhsa_kernel {name}
  .amdhsa_next_free_vgpr {vgpr}
  .amdhsa_next_free_sgpr {sgpr}
  .amdhsa_accum_offset {acc}
  .amdhsa_group_segment_fixed_size 0
  .amdhsa_kernarg_size 96
  .amdhsa_user_sgpr_count 2
  .amdhsa_user_sgpr_kernarg_segment_ptr 1
  .amdhsa_system_sgpr_workgroup_id_x 1
.end_amdhsa_kernel
'''


def main():
    ref = open(f'cdna_kernels/{NAME}.s.ref').read().split('\n')
    head = [l for l in ref if l.startswith(';') and '@launch' not in l]
    out = '\n'.join(head) + '\n'
    out += f'; @launch kernel=kf_kernel grid=(256,1,1) block=(1024,1,1) lds={LDS + (1024 if opts["stamps"] else 0)}\n'
    out += '.amdgcn_target "amdgcn-amd-amdhsa--gfx950"\n.text\n'
    a = Asm()
    gen(a)
    out += a.text()
    out += '.section .rodata,"a"\n'
    out += descriptor('kf_kernel', 128)
    if opts['single']:
        out = out.replace('@launch kernel=kf_kernel ', '@launch ').replace('kf_kernel', NAME + '_kernel')
    open(sys.argv[1], 'w').write(out)


main()
```
